```python
import torch

def _softmax(x, axis=-1):
    return torch.softmax(x, dim=axis)
def _gelu(x):
    return torch.nn.functional.gelu(x, approximate="tanh")
def _silu(x):
    return torch.nn.functional.silu(x)
def _sigmoid(x):
    return torch.sigmoid(x)
def _layernorm(x, axis=-1, eps=1e-5):
    m = x.mean(dim=axis, keepdim=True)
    v = x.var(dim=axis, keepdim=True, unbiased=False)
    return (x - m) / torch.sqrt(v + eps)
def _scatter_add(tgt, idx, src, axis=0):
    return tgt.clone().index_add_(axis, idx, src)
def _segment_sum(src, seg, n):
    out = torch.zeros((n,) + src.shape[1:], dtype=src.dtype)
    return out.index_add_(0, seg, src)
def _pad(x, pw):
    flat = tuple(v for pair in reversed(pw) for v in pair)
    return torch.nn.functional.pad(x, flat)

kernel_name = 'standalone__adm_resblock__diffusion'

def setup_inputs():

    _w = (lambda a: (lambda t: t.to(torch.bfloat16) if t.is_floating_point() else t)(torch.as_tensor(a)))
    B, C, HW, E = 2, 512, 32, 768
    sc = (9.0 * C) ** -0.5
    return {
        "x": _w((lambda *s: torch.randn(*s, dtype=torch.bfloat16) * 0.05)(B, C, HW, HW)),
        "t_emb": _w((lambda *s: torch.randn(*s, dtype=torch.bfloat16) * 0.4)(B, E)),
        "g1": _w(1.0 + 0.1 * (lambda *s: torch.randn(*s, dtype=torch.bfloat16) * 0.4)(C)),
        "be1": _w(0.1 * (lambda *s: torch.randn(*s, dtype=torch.bfloat16) * 0.4)(C)),
        "w1": _w((lambda *s: torch.randn(*s, dtype=torch.bfloat16) * 0.4)(C, C, 3, 3) * sc),
        "w_emb": _w((lambda *s: torch.randn(*s, dtype=torch.bfloat16) * 0.4)(E, C) * (E ** -0.5)),
        "g2": _w(1.0 + 0.1 * (lambda *s: torch.randn(*s, dtype=torch.bfloat16) * 0.4)(C)),
        "be2": _w(0.1 * (lambda *s: torch.randn(*s, dtype=torch.bfloat16) * 0.4)(C)),
        "w2": _w((lambda *s: torch.randn(*s, dtype=torch.bfloat16) * 0.4)(C, C, 3, 3) * sc),
    }

def reference(x, t_emb, g1, be1, w1, w_emb, g2, be2, w2):
    B, C, H, W = x.shape
    G, eps = 4, 1e-5
    def gn(z, gamma, beta):
        zr = z.reshape(B, G, (C // G) * H * W)
        mu = zr.mean(-1).reshape(B, G, 1)
        var = ((zr - mu) ** 2).mean(-1).reshape(B, G, 1)
        zn = ((zr - mu) / torch.sqrt(var + eps)).reshape(B, C, H, W)
        return zn * gamma.reshape(1, C, 1, 1) + beta.reshape(1, C, 1, 1)
    def conv3(z, w):
        zp = _pad(z, ((0, 0), (0, 0), (1, 1), (1, 1)))
        taps = [torch.einsum("bchw,oc->bohw", zp[:, :, i:i+H, j:j+W], w[:, :, i, j]) for i in range(3) for j in range(3)]
        out = taps[0]
        for t in taps[1:]:
            out = out + t
        return out
    h = conv3(_silu(gn(x, g1, be1)), w1)
    emb = _silu(t_emb) @ w_emb
    h = h + emb.reshape(B, C, 1, 1)
    h = conv3(_silu(gn(h, g2, be2)), w2)
    return x + h
```

```python
import re

REG_RE = re.compile(r'\b([vas])(\d+)\b|\b([vas])\[(\d+):(\d+)\]|\b(vcc|exec|m0|scc)\b')

def regs_of(op):
    out = set()
    for m in REG_RE.finditer(op):
        if m.group(1):
            out.add((m.group(1), int(m.group(2))))
        elif m.group(3):
            for i in range(int(m.group(4)), int(m.group(5)) + 1):
                out.add((m.group(3), i))
        else:
            out.add((m.group(6), 0))
    return out

TRANS = ('v_exp_f32', 'v_log_f32', 'v_rcp_f32', 'v_rsq_f32', 'v_sqrt_f32', 'v_sin_f32', 'v_cos_f32')

class Ins:
    __slots__ = ('text', 'mn', 'ops', 'wr', 'rd', 'kind', 'dpp', 'nstates', 'srcc', 'srcab', 'wide_store', 'lds_dma')
    def __init__(self, text):
        self.text = text
        t = text.split(';')[0].strip()
        parts = t.split(None, 1)
        self.mn = mn = parts[0]
        rest = parts[1] if len(parts) > 1 else ''
        ops, cur, depth = [], '', 0
        for ch in rest:
            if ch == '[': depth += 1
            if ch == ']': depth -= 1
            if ch == ',' and depth == 0:
                ops.append(cur.strip()); cur = ''
            else:
                cur += ch
        if cur.strip(): ops.append(cur.strip())
        self.ops = ops
        self.wr, self.rd = set(), set()
        self.dpp = ('_dpp' in mn) or any(k in rest for k in ('row_shr', 'row_shl', 'wave_sh', 'row_bcast', 'quad_perm', 'row_ror', 'row_mirror', 'row_half_mirror', 'wave_ro'))
        self.nstates = 1
        self.srcc = set(); self.srcab = set()
        self.wide_store = False; self.lds_dma = False
        R = [regs_of(o) for o in ops]
        allr = set().union(*R) if R else set()
        if mn == 's_nop':
            self.kind = 'nop'; self.nstates = int(ops[0], 0) + 1
        elif mn.startswith('v_mfma'):
            self.kind = 'mfma'; self.wr = R[0]; self.rd = R[1] | R[2] | R[3]; self.srcc = R[3]; self.srcab = R[1] | R[2]
        elif mn.startswith('v_cmp'):
            self.kind = 'valu'; self.wr = R[0]; self.rd = set().union(*R[1:])
            if mn.startswith('v_cmpx'): self.wr |= {('exec', 0)}
        elif mn.startswith('v_permlane'):
            self.kind = 'valu'; self.wr = R[0] | R[1]; self.rd = R[0] | R[1]
        elif mn.startswith('v_'):
            self.kind = 'valu'; self.wr = set(R[0]); self.rd = set().union(*R[1:]) if len(R) > 1 else set()
            if mn.startswith(('v_fmac', 'v_dot2c', 'v_pk_fmac', 'v_writelane')) or self.dpp or 'sdwa' in mn: self.rd |= R[0]
            if mn.startswith(('v_add_co', 'v_sub_co', 'v_addc_co', 'v_subb_co', 'v_subrev_co')):
                self.wr |= R[1]
            if mn.startswith('v_cndmask') and len(ops) == 3: self.rd |= {('vcc', 0)}
        elif mn.startswith(('buffer_load', 'global_load')):
            self.kind = 'vmem'
            if ' lds' in (' ' + rest) or mn.startswith('global_load_lds'):
                self.rd = allr | {('m0', 0)}; self.lds_dma = True
            else:
                self.wr = R[0]; self.rd = set().union(*R[1:])
        elif mn.startswith(('buffer_store', 'global_store', 'buffer_atomic', 'global_atomic')):
            self.kind = 'vmem'; self.rd = allr
            self.wide_store = mn.endswith(('x3', 'x4'))
            if 'atomic' in mn and ' sc0' in rest:
                self.wr = R[0]
        elif mn.startswith(('buffer_inv', 'buffer_wbl2')):
            self.kind = 'vmem'
        elif mn.startswith('ds_'):
            self.kind = 'ds'
            if mn.startswith(('ds_read', 'ds_bpermute', 'ds_permute', 'ds_swizzle')):
                self.wr = R[0]; self.rd = set().union(*R[1:])
            else:
                self.rd = allr
        elif mn.startswith('s_'):
            self.kind = 'salu'
            if mn.startswith(('s_cmp', 's_cbranch', 's_branch', 's_waitcnt', 's_barrier', 's_endpgm', 's_sleep', 's_setprio', 's_bitcmp')):
                self.rd = allr
            elif mn.startswith(('s_load', 's_buffer_load', 's_memtime', 's_memrealtime')):
                self.kind = 'smem'; self.wr = R[0]; self.rd = set().union(*R[1:]) if len(R) > 1 else set()
            elif 'saveexec' in mn:
                self.wr = R[0] | {('exec', 0)}; self.rd = set().union(*R[1:]) | {('exec', 0)}
            else:
                self.wr = R[0]; self.rd = set().union(*R[1:]) if len(R) > 1 else set()
        else:
            raise ValueError('unknown instr ' + text)

def isv(r): return r[0] in 'va'
def iss(r): return r[0] in ('s', 'vcc')

def required(prev, cur):
    need = 0
    pv = {r for r in prev.wr if isv(r)}
    ps = {r for r in prev.wr if iss(r)}
    if prev.kind == 'valu':
        if cur.kind == 'mfma' and pv & cur.rd: need = max(need, 2)
        if cur.kind == 'valu' and cur.dpp and pv & cur.rd: need = max(need, 2)
        if cur.mn.startswith('v_permlane') and pv & cur.rd: need = max(need, 2)
        if cur.mn.startswith(('v_readlane', 'v_readfirstlane')) and pv & cur.rd: need = max(need, 1)
        if prev.mn.startswith(TRANS) and cur.kind in ('valu', 'mfma') and not cur.mn.startswith(TRANS) and pv & cur.rd: need = max(need, 1)
        if prev.mn.startswith(TRANS) and cur.kind in ('vmem', 'ds') and pv & cur.rd: need = max(need, 1)
        if 'sdwa' in prev.mn and cur.kind == 'valu' and pv & (cur.rd | cur.wr): need = max(need, 1)
        if ps:
            if cur.kind == 'valu' and ps & cur.rd:
                need = max(need, 4 if cur.mn.startswith(('v_readlane', 'v_writelane')) else 2)
            if cur.kind == 'vmem' and ps & cur.rd: need = max(need, 5)
            if cur.kind in ('salu', 'smem') and ps & cur.rd: need = max(need, 1)
        if ('exec', 0) in prev.wr:
            if cur.kind == 'mfma': need = max(need, 4)
            if cur.kind == 'valu' and cur.dpp: need = max(need, 5)
            if cur.mn.startswith(('v_readlane', 'v_readfirstlane', 'v_writelane', 'v_permlane')): need = max(need, 4)
    if prev.kind == 'mfma':
        passes = 8 if '32x32x16' in prev.mn else 4
        big = {8: 12, 4: 8}[passes]
        if cur.kind == 'mfma':
            if prev.wr & cur.srcab: need = max(need, big)
            if prev.wr & cur.srcc and prev.wr != cur.srcc: need = max(need, {8: 10, 4: 6}[passes])
            if (prev.wr & cur.wr) and prev.wr != cur.srcc: need = max(need, big)
        elif cur.kind in ('valu', 'vmem', 'ds'):
            if prev.wr & (cur.rd | cur.wr): need = max(need, big)
        if cur.kind == 'valu' and prev.srcc & cur.wr: need = max(need, {8: 7, 4: 3}[passes])
    if prev.kind == 'salu' and ('m0', 0) in prev.wr and cur.lds_dma: need = max(need, 1)
    if prev.wide_store:
        data = regs_of(prev.ops[0]) if prev.mn.startswith('buffer') else regs_of(prev.ops[1])
        if data & cur.wr: need = max(need, 2)
    return need

class Asm:
    def __init__(self):
        self.items = []
        self.auto = True
    def raw(self, s):
        self.items.append(s)
    def label(self, l):
        self.items.append(l + ':')
    def comment(self, s):
        self.items.append('    ; ' + s)
    def __call__(self, text):
        for line in text.strip().split('\n'):
            line = line.strip()
            if not line or line.startswith(';'): continue
            ins = Ins(line)
            if self.auto:
                lack = self._lack(ins)
                if lack > 0:
                    self.items.append(Ins(f's_nop {lack - 1}'))
            self.items.append(ins)
    def _lack(self, ins):
        dist = 0; lack = 0
        for it in reversed(self.items):
            if isinstance(it, str):
                continue
            if dist >= 13: break
            need = required(it, ins)
            if need > dist: lack = max(lack, need - dist)
            dist += it.nstates
        return lack
    def text(self):
        return '\n'.join(it if isinstance(it, str) else '    ' + it.text for it in self.items) + '\n'
    def check_backedge(self, start_label, end_index=None):
        idx = self.items.index(start_label + ':')
        end = len(self.items) if end_index is None else end_index
        body = [it for it in self.items[idx:end] if not isinstance(it, str)]
        tail, head = body[-14:], body[:14]
        seq = tail + head
        for j in range(len(tail), len(seq)):
            dist = 0
            for i in range(j - 1, -1, -1):
                need = required(seq[i], seq[j])
                assert need <= dist, f'backedge hazard: {seq[i].text} -> {seq[j].text} need {need} have {dist}'
                dist += seq[i].nstates
```

```python
import sys
from asmlib import Asm

WS_A1   = 0
WS_A2   = 2 << 20
WS_H    = 4 << 20
WS_STAT = 8 << 20
WS_EMB  = (8 << 20) + (64 << 10)
WS_FLAG = (8 << 20) + (512 << 10)
WS_SIZE = 16 << 20

SLOT = 36864
LDS_BYTES = 4 * SLOT

S_W, S_A, S_X, S_WS, S_OUT = 4, 8, 12, 16, 20
sWAVE, sB, sG, sOCT, sPXT, sOC0, sY0 = 3, 24, 25, 26, 27, 28, 29
sTAG = 30
P_X, P_T, P_G1, P_B1, P_W1, P_WE, P_G2, P_B2, P_W2, P_OUT, P_DBG, P_WS = [32 + 2 * i for i in range(12)]
sSELE, sSELO = 56, 57
sSTEP, sSOFW, sSOFA, sM0B, sDELTA, sWREC, sAREC = 58, 59, 60, 61, 62, 63, 64
sT = 66
sGAM = 76
sBET = 84
sEMB = 92

vLANE = 1
vDMA = 2
vRD = 3
vACT, vTOP, vBOT = 11, 12, 13
vMM, vMP = 14, 15
vT = 16
vF = 32
vRAW = 68
vA0 = 104
vA1 = 128
vRM = 152
vRP = 176
vVAL = 200
vXPK = 216
NVGPR = 224

def r4(b): return f'v[{b}:{b+3}]'

class Gen:
    def __init__(self):
        self.a = Asm()
        self.uid = 0
    def lbl(self, s):
        self.uid += 1
        return f'L_{s}_{self.uid}'

    def setup(self, exit_label):
        a = self.a
        a(f'''
        s_cmp_ge_u32 s2, 256
        s_cbranch_scc1 {exit_label}
        s_load_dwordx16 s[32:47], s[0:1], 0
        s_load_dwordx8 s[48:55], s[0:1], 64
        v_lshrrev_b32 v{vT}, 6, v0
        v_and_b32 v{vLANE}, 63, v0
        v_readfirstlane_b32 s{sWAVE}, v{vT}
        s_and_b32 s{sT}, s2, 7
        s_lshr_b32 s{sT+1}, s2, 3
        s_lshr_b32 s{sB}, s{sT}, 2
        s_and_b32 s{sG}, s{sT}, 3
        s_and_b32 s{sOCT}, s{sT+1}, 3
        s_lshr_b32 s{sPXT}, s{sT+1}, 2
        s_lshl_b32 s{sOC0}, s{sG}, 7
        s_lshl_b32 s{sT+2}, s{sOCT}, 5
        s_add_u32 s{sOC0}, s{sOC0}, s{sT+2}
        s_lshl_b32 s{sY0}, s{sPXT}, 2
        s_mov_b32 s{sSELE}, 0x07060100
        s_mov_b32 s{sSELO}, 0x05040302
        s_mov_b32 s{sTAG}, 1
        s_waitcnt lgkmcnt(0)
        ''')
    def srd(self, d, ptr, size, add_sgpr=None, add_imm=0):
        a = self.a
        if add_sgpr is None and add_imm == 0:
            a(f's_mov_b32 s{d}, s{ptr}\n s_mov_b32 s{d+1}, s{ptr+1}')
        else:
            if add_sgpr is not None:
                a(f's_add_u32 s{d}, s{ptr}, s{add_sgpr}\n s_addc_u32 s{d+1}, s{ptr+1}, 0')
                if add_imm:
                    a(f's_add_u32 s{d}, s{d}, {add_imm}\n s_addc_u32 s{d+1}, s{d+1}, 0')
            else:
                a(f's_add_u32 s{d}, s{ptr}, {add_imm}\n s_addc_u32 s{d+1}, s{ptr+1}, 0')
        a(f's_mov_b32 s{d+2}, {size}\n s_mov_b32 s{d+3}, 0x00020000')

    def xtile_addr(self, vaddr, soff):
        a = self.a
        a(f'''
        v_lshlrev_b32 v{vaddr}, 2, v{vLANE}
        s_lshl_b32 s{soff}, s{sB}, 20
        s_lshl_b32 s{soff+1}, s{sWAVE}, 3
        s_add_u32 s{soff+1}, s{soff+1}, s{sOC0}
        s_lshl_b32 s{soff+1}, s{soff+1}, 11
        s_add_u32 s{soff}, s{soff}, s{soff+1}
        s_lshl_b32 s{soff+1}, s{sY0}, 6
        s_add_u32 s{soff}, s{soff}, s{soff+1}
        s_add_u32 s{soff+1}, s{soff}, 4096
        s_add_u32 s{soff+2}, s{soff}, 8192
        s_add_u32 s{soff+3}, s{soff}, 12288
        ''')
    def xtile_load(self, vaddr, soff):
        for c in range(8):
            self.a(f'buffer_load_dword v{vXPK+c}, v{vaddr}, s[{S_X}:{S_X+3}], s{soff + c//2} offen offset:{(c%2)*2048}')
    def xtile_unpack(self):
        for c in range(8):
            self.a(f'v_lshlrev_b32 v{vVAL+2*c}, 16, v{vXPK+c}\n v_and_b32 v{vVAL+2*c+1}, 0xffff0000, v{vXPK+c}')

    def wave_reduce(self, regs, full=True):
        a = self.a
        steps = ['row_shr:1 row_mask:0xf bank_mask:0xf bound_ctrl:0', 'row_shr:2 row_mask:0xf bank_mask:0xf bound_ctrl:0',
                 'row_shr:4 row_mask:0xf bank_mask:0xf bound_ctrl:0', 'row_shr:8 row_mask:0xf bank_mask:0xf bound_ctrl:0',
                 'row_bcast:15 row_mask:0xa bank_mask:0xf']
        if full: steps.append('row_bcast:31 row_mask:0xc bank_mask:0xf')
        for st in steps:
            for r in regs:
                a(f'v_add_f32_dpp v{r}, v{r}, v{r} {st}')

    def wave_stats(self):
        a = self.a
        t = vT
        a(f'v_readfirstlane_b32 s{sT}, v{vVAL}')
        D = vRAW
        for i in range(16):
            a(f'v_subrev_f32 v{D+i}, s{sT}, v{vVAL+i}')
        a(f'v_add_f32 v{t}, v{D}, v{D+1}\n v_mul_f32 v{t+1}, v{D}, v{D}\n v_mul_f32 v{t+3}, v{D+1}, v{D+1}\n v_add_f32 v{t+2}, v{D+2}, v{D+3}')
        for i in range(2, 16):
            a(f'v_fmac_f32 v{t+1+2*(i&1)}, v{D+i}, v{D+i}')
            if i >= 4: a(f'v_add_f32 v{t+2*(i&1)}, v{t+2*(i&1)}, v{D+i}')
        a(f'v_add_f32 v{t}, v{t}, v{t+2}\n v_add_f32 v{t+1}, v{t+1}, v{t+3}')
        self.wave_reduce([t, t+1])
        a(f'''
        v_readlane_b32 s{sT+1}, v{t}, 63
        v_readlane_b32 s{sT+2}, v{t+1}, 63
        v_mov_b32 v{t+5}, s{sTAG}
        v_mov_b32 v{t+7}, s{sTAG}
        v_mov_b32 v{t}, 0x3a800000
        v_mul_f32 v{t}, s{sT+1}, v{t}
        v_add_f32 v{t+4}, s{sT}, v{t}
        v_mul_f32 v{t+1}, s{sT+1}, v{t}
        v_sub_f32 v{t+6}, s{sT+2}, v{t+1}
        ''')
    def stats_publish(self, layer, flags=''):
        a = self.a
        a(f'''
        s_and_b32 s{sT}, s2, 7
        s_lshl_b32 s{sT}, s{sT}, 11
        s_lshr_b32 s{sT+1}, s2, 3
        s_lshl_b32 s{sT+1}, s{sT+1}, 2
        s_add_u32 s{sT+1}, s{sT+1}, s{sWAVE}
        s_lshl_b32 s{sT+1}, s{sT+1}, 4
        s_add_u32 s{sT}, s{sT}, s{sT+1}
        s_add_u32 s{sT}, s{sT}, {WS_STAT + layer * 16384}
        v_mov_b32 v{vT}, 0
        s_mov_b64 exec, 1
        buffer_store_dwordx4 v[{vT+4}:{vT+7}], v{vT}, s[{S_WS}:{S_WS+3}], s{sT} offen {flags}
        s_mov_b64 exec, -1
        ''')
    def stats_load(self, layer, flags=''):
        a = self.a
        a(f'''
        s_and_b32 s{sT+8}, s2, 7
        s_lshl_b32 s{sT+8}, s{sT+8}, 11
        s_add_u32 s{sT+8}, s{sT+8}, {WS_STAT + layer * 16384}
        v_lshlrev_b32 v{vT+15}, 4, v{vLANE}
        ''')
        self.stats_load_issue(flags)
    def stats_load_issue(self, flags=''):
        self.a(f'''
        buffer_load_dwordx4 v[{vT+4}:{vT+7}], v{vT+15}, s[{S_WS}:{S_WS+3}], s{sT+8} offen {flags}
        buffer_load_dwordx4 v[{vT+8}:{vT+11}], v{vT+15}, s[{S_WS}:{S_WS+3}], s{sT+8} offen offset:1024 {flags}
        ''')
    def stats_combine(self):
        a = self.a
        t = vT
        a(f'''
        v_readfirstlane_b32 s{sT}, v{t+4}
        v_add_f32 v{t+2}, v{t+6}, v{t+10}
        v_subrev_f32 v{t+4}, s{sT}, v{t+4}
        v_subrev_f32 v{t+8}, s{sT}, v{t+8}
        v_add_f32 v{t}, v{t+4}, v{t+8}
        v_mul_f32 v{t+1}, v{t+4}, v{t+4}
        v_fmac_f32 v{t+1}, v{t+8}, v{t+8}
        ''')
        self.wave_reduce([t, t+1, t+2])
        a(f'''
        v_readlane_b32 s{sT+1}, v{t}, 63
        v_readlane_b32 s{sT+2}, v{t+1}, 63
        v_readlane_b32 s{sT+3}, v{t+2}, 63
        v_mov_b32 v{t+4}, 0x3c000000
        v_mul_f32 v{t+4}, s{sT+1}, v{t+4}
        v_add_f32 v{t}, s{sT}, v{t+4}
        v_mul_f32 v{t+5}, s{sT+1}, v{t+4}
        v_sub_f32 v{t+5}, s{sT+2}, v{t+5}
        v_mov_b32 v{t+6}, s{sT+3}
        v_fmac_f32 v{t+6}, 0x44800000, v{t+5}
        v_mov_b32 v{t+7}, 0x3727c5ac
        v_fmac_f32 v{t+7}, 0x37000000, v{t+6}
        v_rsq_f32 v{t+1}, v{t+7}
        ''')
    def load_gb(self, pg, pb):
        a = self.a
        a(f'''
        s_lshl_b32 s{sT}, s{sWAVE}, 3
        s_add_u32 s{sT}, s{sT}, s{sOC0}
        s_lshl_b32 s{sT}, s{sT}, 1
        s_add_u32 s{sT+2}, s{pg}, s{sT}
        s_addc_u32 s{sT+3}, s{pg+1}, 0
        s_add_u32 s{sT+4}, s{pb}, s{sT}
        s_addc_u32 s{sT+5}, s{pb+1}, 0
        s_load_dwordx4 s[{sGAM+4}:{sGAM+7}], s[{sT+2}:{sT+3}], 0
        s_load_dwordx4 s[{sBET+4}:{sBET+7}], s[{sT+4}:{sT+5}], 0
        ''')
    def unpack_gb(self):
        a = self.a
        a('s_waitcnt lgkmcnt(0)')
        for base in (sGAM, sBET):
            for i in range(4):
                a(f's_lshl_b32 s{base+2*i}, s{base+4+i}, 16\n s_and_b32 s{base+2*i+1}, s{base+4+i}, 0xffff0000') if i < 2 else None
            a(f'''
            s_mov_b32 s{sT}, s{base+6}
            s_mov_b32 s{sT+1}, s{base+7}
            s_lshl_b32 s{base+4}, s{sT}, 16
            s_and_b32 s{base+5}, s{sT}, 0xffff0000
            s_lshl_b32 s{base+6}, s{sT+1}, 16
            s_and_b32 s{base+7}, s{sT+1}, 0xffff0000
            ''')
    def norm_silu_pack(self):
        a = self.a
        SC, SH = vRAW + 8, vRAW + 16
        Z, E_ = vA0, vA0 + 16
        for c in range(8):
            a(f'v_mul_f32 v{SC+c}, s{sGAM+c}, v{vT+1}')
        for c in range(8):
            a(f'v_mov_b32 v{SH+c}, s{sBET+c}')
        for c in range(8):
            a(f'v_fma_f32 v{SH+c}, -v{vT}, v{SC+c}, v{SH+c}')
        for i in range(16):
            a(f'v_fma_f32 v{Z+i}, v{vVAL+i}, v{SC+i//2}, v{SH+i//2}')
        for i in range(16):
            a(f'v_mul_f32 v{E_+i}, 0xbfb8aa3b, v{Z+i}')
        for i in range(16):
            a(f'v_exp_f32 v{E_+i}, v{E_+i}')
        for i in range(16):
            a(f'v_add_f32 v{E_+i}, 1.0, v{E_+i}')
        for i in range(16):
            a(f'v_rcp_f32 v{E_+i}, v{E_+i}')
        for i in range(16):
            a(f'v_mul_f32 v{Z+i}, v{Z+i}, v{E_+i}')
        for e in range(2):
            for cp in range(4):
                a(f'v_cvt_pk_bf16_f32 v{vRAW+4*e+cp}, v{Z+2*(2*cp)+e}, v{Z+2*(2*cp+1)+e}')
    def a_store(self, ws_off, flags=''):
        a = self.a
        a(f'''
        s_lshr_b32 s{sT}, s{sOC0}, 3
        s_add_u32 s{sT}, s{sT}, s{sWAVE}
        s_lshl_b32 s{sT}, s{sT}, 14
        s_lshl_b32 s{sT+1}, s{sB}, 20
        s_add_u32 s{sT}, s{sT}, s{sT+1}
        s_lshl_b32 s{sT+1}, s{sY0}, 9
        s_add_u32 s{sT}, s{sT}, s{sT+1}
        s_add_u32 s{sT}, s{sT}, {ws_off}
        v_lshlrev_b32 v{vT+2}, 5, v{vLANE}
        buffer_store_dwordx4 v[{vRAW}:{vRAW+3}], v{vT+2}, s[{S_WS}:{S_WS+3}], s{sT} offen {flags}
        buffer_store_dwordx4 v[{vRAW+4}:{vRAW+7}], v{vT+2}, s[{S_WS}:{S_WS+3}], s{sT} offen offset:16 {flags}
        ''')

    def emb_load(self):
        a = self.a
        self.srd(S_A, P_T, 3072)
        self.srd(S_W, P_WE, 786432)
        a(f'''
        s_lshl_b32 s{sT}, s{sPXT}, 2
        s_add_u32 s{sT}, s{sT}, s{sWAVE}
        s_mul_i32 s{sT}, s{sT}, 24
        v_lshrrev_b32 v{vA1+12}, 4, v{vLANE}
        v_mul_u32_u24 v{vA1+12}, 6, v{vA1+12}
        v_add_u32 v{vA1+12}, s{sT}, v{vA1+12}
        s_mul_i32 s{sT+1}, s{sB}, 1536
        v_lshlrev_b32 v{vA1+13}, 1, v{vA1+12}
        buffer_load_dwordx3 v[{vA1+8}:{vA1+10}], v{vA1+13}, s[{S_A}:{S_A+3}], s{sT+1} offen
        v_lshlrev_b32 v{vA1+13}, 10, v{vA1+12}
        v_and_b32 v{vA1+14}, 15, v{vLANE}
        v_lshl_add_u32 v{vA1+13}, v{vA1+14}, 2, v{vA1+13}
        s_lshl_b32 s{sT+1}, s{sOC0}, 1
        s_add_u32 s{sT+2}, s{sT+1}, 3072
        ''')
        for k in range(6):
            a(f'buffer_load_dword v{vA1+k}, v{vA1+13}, s[{S_W}:{S_W+3}], s{sT+1+k//3} offen offset:{(k%3)*1024}')
    def emb_compute_publish(self, flags=''):
        a = self.a
        S = vA1 + 16
        E_ = vRM
        for k in range(6):
            src = vA1 + 8 + k // 2
            if k % 2 == 0: a(f'v_lshlrev_b32 v{S+k}, 16, v{src}')
            else: a(f'v_and_b32 v{S+k}, 0xffff0000, v{src}')
        for k in range(6): a(f'v_mul_f32 v{E_+k}, 0xbfb8aa3b, v{S+k}')
        for k in range(6): a(f'v_exp_f32 v{E_+k}, v{E_+k}')
        for k in range(6): a(f'v_add_f32 v{E_+k}, 1.0, v{E_+k}')
        for k in range(6): a(f'v_rcp_f32 v{E_+k}, v{E_+k}')
        for k in range(6): a(f'v_mul_f32 v{S+k}, v{S+k}, v{E_+k}')
        A0, A1_ = vRM + 8, vRM + 10
        for k in range(6):
            a(f'v_lshlrev_b32 v{E_+12}, 16, v{vA1+k}\n v_and_b32 v{E_+13}, 0xffff0000, v{vA1+k}')
            if k == 0:
                a(f'v_mul_f32 v{A0}, v{E_+12}, v{S}\n v_mul_f32 v{A1_}, v{E_+13}, v{S}')
            else:
                a(f'v_fmac_f32 v{A0}, v{E_+12}, v{S+k}\n v_fmac_f32 v{A1_}, v{E_+13}, v{S+k}')
        for sw in ('v_permlane32_swap_b32', 'v_permlane16_swap_b32'):
            a(f'''
            v_mov_b32 v{E_+12}, v{A0}
            v_mov_b32 v{E_+13}, v{A1_}
            {sw} v{E_+12}, v{A0}
            {sw} v{E_+13}, v{A1_}
            v_add_f32 v{A0}, v{A0}, v{E_+12}
            v_add_f32 v{A1_}, v{A1_}, v{E_+13}
            ''')
        a(f'''
        v_mov_b32 v{A0+1}, s{sTAG}
        v_mov_b32 v{A1_+1}, s{sTAG}
        s_lshl_b32 s{sT}, s{sB}, 4
        s_lshr_b32 s{sT+1}, s{sOC0}, 5
        s_add_u32 s{sT}, s{sT}, s{sT+1}
        s_lshl_b32 s{sT}, s{sT}, 13
        s_lshl_b32 s{sT+1}, s{sPXT}, 2
        s_add_u32 s{sT+1}, s{sT+1}, s{sWAVE}
        s_lshl_b32 s{sT+1}, s{sT+1}, 4
        s_add_u32 s{sT}, s{sT}, s{sT+1}
        s_add_u32 s{sT}, s{sT}, {WS_EMB}
        v_lshlrev_b32 v{E_+12}, 9, v{vLANE}
        s_mov_b64 exec, 0xffff
        buffer_store_dwordx4 v[{A0}:{A0+3}], v{E_+12}, s[{S_WS}:{S_WS+3}], s{sT} offen {flags}
        s_mov_b64 exec, -1
        ''')
    def emb_gather_issue(self, base, flags=''):
        a = self.a
        a(f'''
        s_lshl_b32 s{sT+9}, s{sB}, 4
        s_lshr_b32 s{sT+1}, s{sOC0}, 5
        s_add_u32 s{sT+9}, s{sT+9}, s{sT+1}
        s_lshl_b32 s{sT+9}, s{sT+9}, 13
        s_lshl_b32 s{sT+1}, s{sWAVE}, 11
        s_add_u32 s{sT+9}, s{sT+9}, s{sT+1}
        s_add_u32 s{sT+9}, s{sT+9}, {WS_EMB}
        v_lshlrev_b32 v{base+8}, 4, v{vLANE}
        buffer_load_dwordx4 v[{base}:{base+3}], v{base+8}, s[{S_WS}:{S_WS+3}], s{sT+9} offen {flags}
        buffer_load_dwordx4 v[{base+4}:{base+7}], v{base+8}, s[{S_WS}:{S_WS+3}], s{sT+9} offen offset:1024 {flags}
        ''')
    def emb_gather_reduce(self, base):
        a = self.a
        self.wave_reduce([base, base+2, base+4, base+6], full=False)
        for q in range(2):
            for ps in range(2):
                for e in range(2):
                    a(f'v_readlane_b32 s{sEMB + 4*q + 2*ps + e}, v{base + 4*q + 2*e}, {31 + 32*ps}')

    def conv_addr_dma(self):
        a = self.a
        t = vT
        a(f'''
        v_lshrrev_b32 v{t}, 3, v{vLANE}
        s_lshl_b32 s{sT}, s{sWAVE}, 3
        v_add_u32 v{t}, s{sT}, v{t}
        v_bfe_u32 v{t+1}, v{t}, 1, 3
        v_and_b32 v{t+2}, 7, v{vLANE}
        v_xor_b32 v{t+1}, v{t+1}, v{t+2}
        v_mul_u32_u24 v{vDMA}, 9216, v{t}
        v_lshl_add_u32 v{vDMA}, v{t+1}, 4, v{vDMA}
        s_mul_i32 s{sSOFW}, s{sOC0}, 9216
        s_mul_i32 s{sM0B}, s{sWAVE}, 9216
        ''')
    def dma_ops(self):
        ops = []
        for k in range(9):
            if k == 0: ops.append(f's_mov_b32 m0, s{sM0B}')
            else: ops.append('s_add_u32 m0, m0, 896')
            ops.append(f'buffer_load_dwordx4 v{vDMA}, s[{S_W}:{S_W+3}], s{sSOFW} offen offset:{128*k} lds')
        return ops
    def dma_advance(self):
        return [f's_add_u32 s{sSOFW}, s{sSOFW}, 1152',
                f's_add_u32 s{sM0B}, s{sM0B}, {SLOT}',
                f's_sub_u32 s{sT}, s{sM0B}, {4*SLOT}',
                f's_cmp_ge_u32 s{sM0B}, {4*SLOT}',
                f's_cselect_b32 s{sM0B}, s{sT}, s{sM0B}']
    def conv_addr_rest(self):
        a = self.a
        t = vT
        a(f'''
        v_and_b32 v{t}, 31, v{vLANE}
        v_lshrrev_b32 v{t+1}, 3, v{t}
        v_mul_u32_u24 v{t+1}, 9216, v{t+1}
        v_and_b32 v{t+2}, 7, v{t}
        v_lshl_add_u32 v{t+1}, v{t+2}, 7, v{t+1}
        v_bfe_u32 v{t+2}, v{t}, 1, 3
        v_lshrrev_b32 v{t+3}, 5, v{vLANE}
        v_mul_u32_u24 v{t+4}, 9, v{t+3}
        s_mul_i32 s{sT}, s{sWAVE}, 18
        v_add_u32 v{t+4}, s{sT}, v{t+4}
        ''')
        for j in range(8):
            a(f'''
            v_add_u32 v{t+5}, {j}, v{t+4}
            v_lshrrev_b32 v{t+6}, 3, v{t+5}
            v_and_b32 v{t+5}, 7, v{t+5}
            v_xor_b32 v{t+5}, v{t+5}, v{t+2}
            v_lshl_add_u32 v{t+6}, v{t+6}, 10, v{t+1}
            v_lshl_add_u32 v{vRD+j}, v{t+5}, 4, v{t+6}
            ''')
        a(f'''
        v_cmp_ne_u32 vcc, 0, v{t}
        v_cndmask_b32 v{vMM}, 0, -1, vcc
        v_cmp_ne_u32 vcc, 31, v{t}
        v_cndmask_b32 v{vMP}, 0, -1, vcc
        s_mov_b32 s{sDELTA}, {2*SLOT}
        ''')
    def conv_addr_act(self):
        a = self.a
        t = vT
        a(f'''
        v_and_b32 v{t}, 31, v{vLANE}
        v_lshrrev_b32 v{t+3}, 5, v{vLANE}
        v_lshlrev_b32 v{vACT}, 4, v{t}
        v_lshl_add_u32 v{vACT}, v{t+3}, 14, v{vACT}
        s_lshl_b32 s{sT}, s{sWAVE}, 15
        s_lshl_b32 s{sT+1}, s{sY0}, 9
        s_add_u32 s{sT}, s{sT}, s{sT+1}
        v_add_u32 v{vACT}, s{sT}, v{vACT}
        s_cmp_eq_u32 s{sPXT}, 0
        s_cselect_b32 s{sT}, 0x40000000, -512
        v_add_u32 v{vTOP}, s{sT}, v{vACT}
        s_cmp_eq_u32 s{sPXT}, 7
        s_cselect_b32 s{sT}, 0x40000000, 2048
        v_add_u32 v{vBOT}, s{sT}, v{vACT}
        s_mov_b32 s{sSOFA}, 0
        ''')
    def act_ops(self, base, flags=''):
        ops = []
        for j in range(6):
            if j == 0: ad, off = vTOP, 0
            elif j == 5: ad, off = vBOT, 0
            else: ad, off = vACT, (j - 1) * 512
            ops.append(f'buffer_load_dwordx4 {r4(base+4*j)}, v{ad}, s[{S_A}:{S_A+3}], s{sSOFA} offen offset:{off} {flags}')
        ops.append(f's_add_u32 s{sSOFA}, s{sSOFA}, 131072')
        return ops
    def raw_reads(self, off):
        ops = []
        for j in range(9):
            ops.append(f'ds_read_b128 {r4(vRAW+4*j)}, v{vRD + (j % 8)} offset:{off + (1024 if j == 8 else 0)}')
        return ops
    def perms(self, kx):
        ops = []
        for ky in range(3):
            t = 3 * ky + kx
            for m in range(4):
                aidx = (18 * m + t) // 2; bidx = (18 * m + 9 + t) // 2
                sel = sSELE if t % 2 == 0 else sSELO
                ops.append(f'v_perm_b32 v{vF+4*t+m}, v{vRAW+bidx}, v{vRAW+aidx}, s{sel}')
        return ops
    def shifts(self, src, dst, left):
        ops = []
        for i in range(24):
            if left: ops.append(f'v_and_b32_dpp v{dst+i}, v{src+i}, v{vMP} wave_shl:1 row_mask:0xf bank_mask:0xf bound_ctrl:0')
            else: ops.append(f'v_and_b32_dpp v{dst+i}, v{src+i}, v{vMM} wave_shr:1 row_mask:0xf bank_mask:0xf bound_ctrl:0')
        return ops
    def mfmas(self, kx, X):
        ops = []
        for ky in range(3):
            for i in range(4):
                ops.append(f'v_mfma_f32_32x32x16_bf16 a[{16*i}:{16*i+15}], {r4(vF+4*(3*ky+kx))}, {r4(X+4*(i+ky))}, a[{16*i}:{16*i+15}]')
        return ops
    def interleave(self, mf, fill):
        a = self.a
        n = len(mf)
        done = 0
        for i, m in enumerate(mf):
            a(m)
            upto = (len(fill) * (i + 1) + n - 1) // n
            while done < upto:
                a(fill[done]); done += 1
    def conv_step(self, p, aflags=''):
        ACT = vA0 if p == 0 else vA1
        ACTN = vA1 if p == 0 else vA0
        f1 = self.perms(2) + ['s_barrier'] + self.raw_reads(SLOT if p == 0 else 0) + self.shifts(ACT, vRP, True)
        self.interleave(self.mfmas(1, ACT), f1)
        rec = [f's_cmp_lt_u32 s{sSTEP}, 6', f's_cselect_b32 s{S_A+2}, s{sAREC}, 0',
               f's_cmp_lt_u32 s{sSTEP}, 4', f's_cselect_b32 s{S_W+2}, s{sWREC}, 0']
        f2 = rec + self.act_ops(ACT, aflags) + ['s_waitcnt lgkmcnt(0)'] + self.perms(1) + self.dma_ops() + self.dma_advance()
        self.interleave(self.mfmas(0, vRM), f2)
        tog = []
        if p == 0:
            tog = [f'v_add_u32 v{vRD+j}, s{sDELTA}, v{vRD+j}' for j in range(8)] + [f's_sub_u32 s{sDELTA}, 0, s{sDELTA}']
        sh = self.shifts(ACTN, vRM, False)
        shw = []
        for j in range(6):
            shw.append(f's_waitcnt vmcnt({24 + 5 - j})')
            shw += sh[4*j:4*j+4]
        f3 = self.perms(0) + tog + shw + [f's_add_u32 s{sSTEP}, s{sSTEP}, 1']
        self.interleave(self.mfmas(2, vRP), f3)
    def conv_prologue_standalone(self, aflags=''):
        a = self.a
        def dma():
            for o in self.dma_ops() + self.dma_advance(): a(o)
        dma(); dma()
        self.conv_addr_act()
        for o in self.act_ops(vA0, aflags): a(o)
        dma()
        for o in self.act_ops(vA1, aflags): a(o)
        dma()
        self.conv_addr_rest()
        for i in range(64): a(f'v_accvgpr_write_b32 a{i}, 0')
        a('s_waitcnt vmcnt(39)')
        a('s_barrier')
        for o in self.raw_reads(0): a(o)
        a('s_waitcnt lgkmcnt(0)')
        for o in self.perms(1) + self.perms(0): a(o)
        a('s_waitcnt vmcnt(24)')
        for o in self.shifts(vA0, vRM, False): a(o)
        a(f's_mov_b32 s{sSTEP}, 0')
    def conv_loop(self, aflags=''):
        a = self.a
        L = self.lbl('conv')
        a.label(L)
        self.conv_step(0, aflags)
        self.conv_step(1, aflags)
        a(f's_cmp_lt_u32 s{sSTEP}, 8')
        a(f's_cbranch_scc1 {L}')
        a.check_backedge(L)
    def conv_reduce(self, scratch, vm=0):
        a = self.a
        t = vT
        ROW, SRC = 4224, 16896
        a(f'''
        v_and_b32 v{t}, 31, v{vLANE}
        v_lshrrev_b32 v{t+1}, 5, v{vLANE}
        v_bfe_u32 v{t+2}, v{t}, 1, 2
        v_lshrrev_b32 v{t+3}, 4, v{t}
        v_xor_b32 v{t+3}, v{t+3}, v{t}
        v_and_b32 v{t+3}, 1, v{t+3}
        v_lshl_or_b32 v{t+2}, v{t+3}, 2, v{t+2}
        v_xor_b32 v{t+2}, v{t+2}, v{t+1}
        s_mul_i32 s{sT}, s{sWAVE}, {SRC}
        s_add_u32 s{sT}, s{sT}, {scratch}
        v_lshlrev_b32 v{t+3}, 7, v{t}
        v_add_u32 v{t+3}, s{sT}, v{t+3}
        ''')
        for q in range(4):
            a(f'v_xor_b32 v{t+4+q}, {2*q}, v{t+2}\n v_lshl_add_u32 v{t+4+q}, v{t+4+q}, 4, v{t+3}')
        a(f'''
        v_and_b32 v{t}, 15, v{vLANE}
        v_lshrrev_b32 v{t+1}, 4, v{vLANE}
        v_mul_u32_u24 v{t+1}, {ROW}, v{t+1}
        v_lshl_add_u32 v{t+1}, v{t}, 8, v{t+1}
        v_add_u32 v{t+1}, {scratch}, v{t+1}
        v_and_b32 v{t+2}, 3, v{t}
        v_lshrrev_b32 v{t+3}, 3, v{t}
        v_lshl_or_b32 v{t+2}, v{t+3}, 2, v{t+2}
        s_lshl_b32 s{sT}, s{sWAVE}, 1
        v_xor_b32 v{t+2}, s{sT}, v{t+2}
        ''')
        for e in range(2):
            for hh in range(2):
                d = t + 8 + 2 * e + hh
                a(f'v_xor_b32 v{d}, {(e << 2) | hh}, v{t+2}\n v_lshl_add_u32 v{d}, v{d}, 4, v{t+1}')
        a(f's_waitcnt vmcnt({vm}) lgkmcnt(0)')
        a('s_barrier')
        for i in range(4):
            for q in range(4):
                a(f'ds_write_b128 v{t+4+q}, a[{16*i+4*q}:{16*i+4*q+3}] offset:{i*ROW}')
        a('s_waitcnt lgkmcnt(0)')
        a('s_barrier')
        RB = vF
        for src in range(4):
            for e in range(2):
                for hh in range(2):
                    a(f'ds_read_b128 {r4(RB + 16*src + 4*(2*e+hh))}, v{t+8+2*e+hh} offset:{src*SRC + e*128}')
        for src in range(1, 4):
            a(f's_waitcnt lgkmcnt({12 - 4*src})')
            for e in range(2):
                for hh in range(2):
                    for tt in range(4):
                        c = 4 * hh + tt
                        acc = RB + 4*(2*e+hh) + tt
                        dst = vVAL + 2*c + e if src == 3 else acc
                        a(f'v_add_f32 v{dst}, v{acc}, v{RB + 16*src + 4*(2*e+hh) + tt}')
    def out_store(self, vaddr, soff):
        a = self.a
        for c in range(8):
            a(f'''
            v_lshlrev_b32 v{vRAW+2*c}, 16, v{vXPK+c}
            v_and_b32 v{vRAW+2*c+1}, 0xffff0000, v{vXPK+c}
            v_add_f32 v{vRAW+2*c}, v{vRAW+2*c}, v{vVAL+2*c}
            v_add_f32 v{vRAW+2*c+1}, v{vRAW+2*c+1}, v{vVAL+2*c+1}
            v_cvt_pk_bf16_f32 v{vRAW+16+c}, v{vRAW+2*c}, v{vRAW+2*c+1}
            buffer_store_dword v{vRAW+16+c}, v{vaddr}, s[{S_OUT}:{S_OUT+3}], s{soff + c//2} offen offset:{(c%2)*2048}
            ''')

    def begin_kernel(self, name):
        self.a.raw(f'.globl {name}\n.p2align 8\n.type {name},@function\n{name}:')
    def end_kernel(self, exit_label):
        self.a.label(exit_label)
        self.a('s_endpgm')

def kd(name, vgpr, agpr, sgpr=102):
    acc = (vgpr + 3) // 4 * 4
    return f""".p2align 6
.amdhsa_kernel {name}
  .amdhsa_next_free_vgpr {acc + agpr}
  .amdhsa_next_free_sgpr {sgpr}
  .amdhsa_accum_offset {acc}
  .amdhsa_group_segment_fixed_size 0
  .amdhsa_kernarg_size 96
  .amdhsa_user_sgpr_count 2
  .amdhsa_user_sgpr_kernarg_segment_ptr 1
  .amdhsa_system_sgpr_workgroup_id_x 1
.end_amdhsa_kernel
"""

def h_addr(g):
    a = g.a
    a(f'''
    s_lshl_b32 s{sT+10}, s2, 14
    s_add_u32 s{sT+10}, s{sT+10}, {WS_H}
    v_lshlrev_b32 v{vT+14}, 6, v0
    ''')

def gen_baseline():
    g = Gen(); a = g.a
    names = ['ka_kernel', 'kb_kernel', 'kc_kernel', 'kd_kernel', 'ke_kernel']
    lds = [0, 0, LDS_BYTES, 0, LDS_BYTES]
    hdr = ''.join(f'; @launch kernel={n} grid=(256,1,1) block=(256,1,1) lds={l}\n' for n, l in zip(names, lds))
    hdr += '.amdgcn_target "amdgcn-amd-amdhsa--gfx950"\n.text\n'
    sX = sT + 4
    g.begin_kernel('ka_kernel'); g.setup('L_exit_a')
    g.srd(S_X, P_X, 2 << 20); g.srd(S_WS, P_WS, WS_SIZE)
    g.xtile_addr(vT + 13, sX); g.xtile_load(vT + 13, sX)
    g.emb_load()
    a('s_waitcnt vmcnt(7)')
    g.xtile_unpack(); g.wave_stats(); g.stats_publish(0)
    a('s_waitcnt vmcnt(1)')
    g.emb_compute_publish()
    g.end_kernel('L_exit_a')
    g.begin_kernel('kb_kernel'); g.setup('L_exit_b')
    g.srd(S_X, P_X, 2 << 20); g.srd(S_WS, P_WS, WS_SIZE)
    g.xtile_addr(vT + 13, sX); g.xtile_load(vT + 13, sX)
    g.stats_load(0)
    g.load_gb(P_G1, P_B1); g.unpack_gb()
    a('s_waitcnt vmcnt(0)')
    g.xtile_unpack(); g.stats_combine(); g.norm_silu_pack(); g.a_store(WS_A1)
    g.end_kernel('L_exit_b')
    g.begin_kernel('kc_kernel'); g.setup('L_exit_c')
    g.srd(S_W, P_W1, 4718592); a(f's_mov_b32 s{sWREC}, 4718592\n s_mov_b32 s{sAREC}, {1<<20}')
    g.conv_addr_dma()
    a(f's_lshl_b32 s{sT+4}, s{sB}, 20')
    g.srd(S_A, P_WS, 1 << 20, add_sgpr=sT + 4, add_imm=WS_A1)
    g.srd(S_WS, P_WS, WS_SIZE)
    g.conv_prologue_standalone()
    g.conv_loop()
    a('s_waitcnt vmcnt(0)')
    g.emb_gather_issue(vA0)
    g.conv_reduce(0, vm=2)
    a('s_waitcnt vmcnt(0)')
    g.emb_gather_reduce(vA0)
    for c in range(8):
        a(f'v_add_f32 v{vVAL+2*c}, s{sEMB+c}, v{vVAL+2*c}\n v_add_f32 v{vVAL+2*c+1}, s{sEMB+c}, v{vVAL+2*c+1}')
    g.wave_stats(); g.stats_publish(1)
    h_addr(g)
    for i in range(4):
        a(f'buffer_store_dwordx4 {r4(vVAL+4*i)}, v{vT+14}, s[{S_WS}:{S_WS+3}], s{sT+10} offen offset:{16*i}')
    g.end_kernel('L_exit_c')
    g.begin_kernel('kd_kernel'); g.setup('L_exit_d')
    g.srd(S_WS, P_WS, WS_SIZE)
    h_addr(g)
    for i in range(4):
        a(f'buffer_load_dwordx4 {r4(vVAL+4*i)}, v{vT+14}, s[{S_WS}:{S_WS+3}], s{sT+10} offen offset:{16*i}')
    g.stats_load(1)
    g.load_gb(P_G2, P_B2); g.unpack_gb()
    a('s_waitcnt vmcnt(0)')
    g.stats_combine(); g.norm_silu_pack(); g.a_store(WS_A2)
    g.end_kernel('L_exit_d')
    g.begin_kernel('ke_kernel'); g.setup('L_exit_e')
    g.srd(S_W, P_W2, 4718592); a(f's_mov_b32 s{sWREC}, 4718592\n s_mov_b32 s{sAREC}, {1<<20}')
    g.conv_addr_dma()
    a(f's_lshl_b32 s{sT+4}, s{sB}, 20')
    g.srd(S_A, P_WS, 1 << 20, add_sgpr=sT + 4, add_imm=WS_A2)
    g.srd(S_X, P_X, 2 << 20); g.srd(S_OUT, P_OUT, 2 << 20)
    g.conv_prologue_standalone()
    g.conv_loop()
    sXE = sGAM
    g.xtile_addr(vRP, sXE); g.xtile_load(vRP, sXE)
    g.conv_reduce(0, vm=8)
    a('s_waitcnt vmcnt(0)')
    g.out_store(vRP, sXE)
    g.end_kernel('L_exit_e')
    txt = hdr + a.text() + '.section .rodata,"a"\n'
    for n in names:
        txt += kd(n, NVGPR, 64)
    return txt

if __name__ == '__main__':
    mode = sys.argv[1] if len(sys.argv) > 1 else 'baseline'
    out = sys.argv[2] if len(sys.argv) > 2 else 'standalone__adm_resblock__diffusion.s'
    txt = {'baseline': gen_baseline}[mode]()
    open(out, 'w').write(txt)
    print('wrote', out, len(txt))
```

```python
import sys
from asmlib import Asm, Ins, regs_of

WS_A1   = 0
WS_A2   = 2 << 20
WS_H    = 4 << 20
WS_STAT = 8 << 20
WS_EMB  = (8 << 20) + (64 << 10)
WS_FLAG = (9 << 20)
WS_EPOCH = (8 << 20) + (576 << 10)
WS_STATB = (8 << 20) + (640 << 10)
WS_STAMP = 10 << 20
WS_SIZE = 16 << 20

SLOT = 36864
DUMMY = 4 * SLOT
LDS_BYTES = 163840

S_W, S_A, S_X, S_WS, S_OUT = 4, 8, 12, 16, 20
sWAVE, sB, sG, sOCT, sPXT, sOC0, sY0 = 3, 24, 25, 26, 27, 28, 29
sTAG, sLAYER = 30, 31
P_X, P_T, P_G1, P_B1, P_W1, P_WE, P_G2, P_B2, P_W2, P_OUT, P_DBG, P_WS = [32 + 2 * i for i in range(12)]
sSELE, sSELO = 56, 57
sQ, sSOFW, sSOFA, sWOFF, sRECB, sW0, sRECA, sAREC1, sITER = 58, 59, 60, 61, 62, 63, 64, 65, 66
sT = 67
sGAM = 76
sBET = 84
sEMB = 92
sXO = 0

vLANE = 1
vDMA = [2, 16, 17, 18, 19, 20, 21, 22, 23]
vRD = 3
vRD2 = 24
vACT, vTOP, vBOT = 11, 12, 13
vSTAMP = 14
vXA = 15
vT = 232
vF = 32
vRAW = 68
vR = [104, 152]
vS = 200
vXPK = 248
TMP = 104
vVAL = 200
TMP2 = 216
NVGPR = 256
STAMPS = False
EXP = set()

def r4(b): return f'v[{b}:{b+3}]'

class Gen:
    def __init__(self):
        self.a = Asm()
        self.uid = 0
    def lbl(self, s):
        self.uid += 1
        return f'L_{s}_{self.uid}'
    def stamp(self, i, cyc=False):
        if not STAMPS: return
        self.a(f'''
        {'s_memtime' if cyc else 's_memrealtime'} s[100:101]
        s_waitcnt lgkmcnt(0)
        v_writelane_b32 v{vSTAMP}, s100, {i}
        ''')
    def stamp_l(self, i):
        if not STAMPS: return
        self.a(f'''
        s_memrealtime s[100:101]
        s_lshl_b32 m0, s{sLAYER}, 4
        s_add_u32 m0, m0, {i}
        s_waitcnt lgkmcnt(0)
        s_nop 3
        v_writelane_b32 v{vSTAMP}, s100, m0
        ''')
    def stamp_flush(self, k):
        if not STAMPS: return
        self.srd(S_WS, P_WS, WS_SIZE)
        self.a(f'''
        s_lshl_b32 s100, s2, 10
        s_add_u32 s100, s100, {WS_STAMP + k * (256 << 10)}
        v_lshlrev_b32 v{vT}, 2, v0
        buffer_store_dword v{vSTAMP}, v{vT}, s[{S_WS}:{S_WS+3}], s100 offen
        ''')

    def setup(self, exit_label):
        self.a(f'''
        s_cmp_ge_u32 s2, 256
        s_cbranch_scc1 {exit_label}
        s_load_dwordx16 s[32:47], s[0:1], 0
        s_load_dwordx8 s[48:55], s[0:1], 64
        v_lshrrev_b32 v{vT}, 6, v0
        v_and_b32 v{vLANE}, 63, v0
        v_readfirstlane_b32 s{sWAVE}, v{vT}
        s_and_b32 s{sT}, s2, 7
        s_lshr_b32 s{sT+1}, s2, 3
        s_lshr_b32 s{sB}, s{sT}, 2
        s_and_b32 s{sG}, s{sT}, 3
        s_and_b32 s{sOCT}, s{sT+1}, 3
        s_lshr_b32 s{sPXT}, s{sT+1}, 2
        s_lshl_b32 s{sOC0}, s{sG}, 7
        s_lshl_b32 s{sT+2}, s{sOCT}, 5
        s_add_u32 s{sOC0}, s{sOC0}, s{sT+2}
        s_lshl_b32 s{sY0}, s{sPXT}, 2
        s_mov_b32 s{sSELE}, 0x07060100
        s_mov_b32 s{sSELO}, 0x05040302
        s_mov_b32 s{sTAG}, 1
        ''')
    def srd(self, d, ptr, size, add_sgpr=None, add_imm=0):
        a = self.a
        if add_sgpr is None and add_imm == 0:
            a(f's_mov_b32 s{d}, s{ptr}\n s_mov_b32 s{d+1}, s{ptr+1}')
        else:
            if add_sgpr is not None:
                a(f's_add_u32 s{d}, s{ptr}, s{add_sgpr}\n s_addc_u32 s{d+1}, s{ptr+1}, 0')
                if add_imm:
                    a(f's_add_u32 s{d}, s{d}, {add_imm}\n s_addc_u32 s{d+1}, s{d+1}, 0')
            else:
                a(f's_add_u32 s{d}, s{ptr}, {add_imm}\n s_addc_u32 s{d+1}, s{ptr+1}, 0')
        a(f's_mov_b32 s{d+2}, {size}\n s_mov_b32 s{d+3}, 0x00020000')

    def xtile_addr(self):
        self.a(f'''
        s_lshl_b32 s{sT}, s{sB}, 20
        s_lshl_b32 s{sT+1}, s{sWAVE}, 3
        s_add_u32 s{sT+1}, s{sT+1}, s{sOC0}
        s_lshl_b32 s{sT+1}, s{sT+1}, 11
        s_add_u32 s{sT}, s{sT}, s{sT+1}
        s_lshl_b32 s{sT+1}, s{sY0}, 6
        s_add_u32 s{sT}, s{sT}, s{sT+1}
        v_lshlrev_b32 v{vXA}, 2, v{vLANE}
        v_add_u32 v{vXA}, s{sT}, v{vXA}
        ''')
    def xsoffs(self):
        self.a(f's_movk_i32 s{sT+1}, 4096\n s_movk_i32 s{sT+2}, 8192\n s_movk_i32 s{sT+3}, 12288')
        return ['0', f's{sT+1}', f's{sT+2}', f's{sT+3}']
    def xtile_load(self):
        so = self.xsoffs()
        for c in range(8):
            self.a(f'buffer_load_dword v{vXPK+c}, v{vXA}, s[{S_X}:{S_X+3}], {so[c//2]} offen offset:{(c%2)*2048}')
    def xtile_unpack(self):
        for c in range(8):
            self.a(f'v_lshlrev_b32 v{vVAL+2*c}, 16, v{vXPK+c}\n v_and_b32 v{vVAL+2*c+1}, 0xffff0000, v{vXPK+c}')

    def wave_reduce(self, regs, full=True):
        steps = ['row_shr:1 row_mask:0xf bank_mask:0xf bound_ctrl:0', 'row_shr:2 row_mask:0xf bank_mask:0xf bound_ctrl:0',
                 'row_shr:4 row_mask:0xf bank_mask:0xf bound_ctrl:0', 'row_shr:8 row_mask:0xf bank_mask:0xf bound_ctrl:0',
                 'row_bcast:15 row_mask:0xa bank_mask:0xf']
        if full: steps.append('row_bcast:31 row_mask:0xc bank_mask:0xf')
        for st in steps:
            for r in regs:
                self.a(f'v_add_f32_dpp v{r}, v{r}, v{r} {st}')

    def wave_stats(self):
        a = self.a
        t = vT
        a(f'v_readfirstlane_b32 s{sT}, v{vVAL}')
        D = TMP2
        for i in range(16):
            a(f'v_subrev_f32 v{D+i}, s{sT}, v{vVAL+i}')
        a(f'v_add_f32 v{t}, v{D}, v{D+1}\n v_mul_f32 v{t+1}, v{D}, v{D}\n v_mul_f32 v{t+3}, v{D+1}, v{D+1}\n v_add_f32 v{t+2}, v{D+2}, v{D+3}')
        for i in range(2, 16):
            a(f'v_fmac_f32 v{t+1+2*(i&1)}, v{D+i}, v{D+i}')
            if i >= 4: a(f'v_add_f32 v{t+2*(i&1)}, v{t+2*(i&1)}, v{D+i}')
        a(f'v_add_f32 v{t}, v{t}, v{t+2}\n v_add_f32 v{t+1}, v{t+1}, v{t+3}')
        self.wave_reduce([t, t+1])
        a(f'''
        v_readlane_b32 s{sT+1}, v{t}, 63
        v_readlane_b32 s{sT+2}, v{t+1}, 63
        v_mov_b32 v{t+5}, s{sTAG}
        v_mov_b32 v{t+7}, s{sTAG}
        v_mov_b32 v{t}, 0x3a800000
        v_mul_f32 v{t}, s{sT+1}, v{t}
        v_add_f32 v{t+4}, s{sT}, v{t}
        v_mul_f32 v{t+1}, s{sT+1}, v{t}
        v_sub_f32 v{t+6}, s{sT+2}, v{t+1}
        ''')
    def stat_base(self, dst, layer):
        a = self.a
        a(f's_and_b32 s{dst}, s2, 7\n s_lshl_b32 s{dst}, s{dst}, 11')
        if layer is None:
            a(f's_lshl_b32 s{sT+7}, s{sLAYER}, 14\n s_add_u32 s{dst}, s{dst}, s{sT+7}\n s_add_u32 s{dst}, s{dst}, {WS_STAT}')
        else:
            a(f's_add_u32 s{dst}, s{dst}, {WS_STAT + layer * 16384}')
    def stats_publish(self, layer, flags=''):
        a = self.a
        self.stat_base(sT + 8, layer)
        a(f'''
        s_lshr_b32 s{sT+1}, s2, 3
        s_lshl_b32 s{sT+1}, s{sT+1}, 2
        s_add_u32 s{sT+1}, s{sT+1}, s{sWAVE}
        s_lshl_b32 s{sT+1}, s{sT+1}, 4
        s_add_u32 s{sT}, s{sT+8}, s{sT+1}
        v_mov_b32 v{vT}, 0
        s_mov_b64 exec, 1
        buffer_store_dwordx4 v[{vT+4}:{vT+7}], v{vT}, s[{S_WS}:{S_WS+3}], s{sT} offen {flags}
        s_mov_b64 exec, -1
        v_lshlrev_b32 v{vT+15}, 4, v{vLANE}
        ''')
    def stats_load_issue(self, flags=''):
        self.a(f'''
        buffer_load_dwordx4 v[{vT+4}:{vT+7}], v{vT+15}, s[{S_WS}:{S_WS+3}], s{sT+8} offen {flags}
        buffer_load_dwordx4 v[{vT+8}:{vT+11}], v{vT+15}, s[{S_WS}:{S_WS+3}], s{sT+8} offen offset:1024 {flags}
        ''')
    def poll4(self, issue, regs, name, slp='', retry=None):
        a = self.a
        L = self.lbl(name); D = self.lbl(name + '_done')
        a(f's_mov_b32 s{sT+6}, 0')
        a.label(L)
        issue()
        a('s_waitcnt vmcnt(0)')
        a(f'v_cmp_ne_u32 vcc, s{sTAG}, v{regs[0]}')
        for r in regs[1:]:
            a(f'v_cmp_ne_u32_e64 s[52:53], s{sTAG}, v{r}')
            a('s_or_b64 vcc, vcc, s[52:53]')
        a(f's_cmp_eq_u64 vcc, 0\n s_cbranch_scc1 {D}')
        if slp: a(slp)
        if retry: retry()
        a(f'''
        s_add_u32 s{sT+6}, s{sT+6}, 1
        s_cmp_lt_u32 s{sT+6}, 0x40000
        s_cbranch_scc1 {L}
        ''')
        a.label(D)
    def stats_combine(self):
        a = self.a
        t = vT
        a(f'''
        v_readfirstlane_b32 s{sT}, v{t+4}
        v_add_f32 v{t+2}, v{t+6}, v{t+10}
        v_subrev_f32 v{t+4}, s{sT}, v{t+4}
        v_subrev_f32 v{t+8}, s{sT}, v{t+8}
        v_add_f32 v{t}, v{t+4}, v{t+8}
        v_mul_f32 v{t+1}, v{t+4}, v{t+4}
        v_fmac_f32 v{t+1}, v{t+8}, v{t+8}
        ''')
        self.wave_reduce([t, t+1, t+2])
        a(f'''
        v_readlane_b32 s{sT+1}, v{t}, 63
        v_readlane_b32 s{sT+2}, v{t+1}, 63
        v_readlane_b32 s{sT+3}, v{t+2}, 63
        v_mov_b32 v{t+4}, 0x3c000000
        v_mul_f32 v{t+4}, s{sT+1}, v{t+4}
        v_add_f32 v{t}, s{sT}, v{t+4}
        v_mul_f32 v{t+5}, s{sT+1}, v{t+4}
        v_sub_f32 v{t+5}, s{sT+2}, v{t+5}
        v_mov_b32 v{t+6}, s{sT+3}
        v_fmac_f32 v{t+6}, 0x44800000, v{t+5}
        v_mov_b32 v{t+7}, 0x3727c5ac
        v_fmac_f32 v{t+7}, 0x37000000, v{t+6}
        v_rsq_f32 v{t+1}, v{t+7}
        ''')
    def load_gb(self, pg, pb):
        self.a(f'''
        s_lshl_b32 s{sT}, s{sWAVE}, 3
        s_add_u32 s{sT}, s{sT}, s{sOC0}
        s_lshl_b32 s{sT}, s{sT}, 1
        s_add_u32 s{sT+1}, s{pg}, s{sT}
        s_addc_u32 s{sT+2}, s{pg+1}, 0
        s_add_u32 s{sT+3}, s{pb}, s{sT}
        s_addc_u32 s{sT+4}, s{pb+1}, 0
        s_load_dwordx4 s[{sGAM+4}:{sGAM+7}], s[{sT+1}:{sT+2}], 0
        s_load_dwordx4 s[{sBET+4}:{sBET+7}], s[{sT+3}:{sT+4}], 0
        ''')
    def unpack_gb(self):
        a = self.a
        a('s_waitcnt lgkmcnt(0)')
        for base in (sGAM, sBET):
            for i in range(2):
                a(f's_lshl_b32 s{base+2*i}, s{base+4+i}, 16\n s_and_b32 s{base+2*i+1}, s{base+4+i}, 0xffff0000')
            a(f'''
            s_mov_b32 s{sT}, s{base+6}
            s_mov_b32 s{sT+1}, s{base+7}
            s_lshl_b32 s{base+4}, s{sT}, 16
            s_and_b32 s{base+5}, s{sT}, 0xffff0000
            s_lshl_b32 s{base+6}, s{sT+1}, 16
            s_and_b32 s{base+7}, s{sT+1}, 0xffff0000
            ''')
    def norm_silu_pack(self):
        a = self.a
        SC, SH = TMP + 8, TMP + 16
        Z, E_ = TMP + 24, TMP + 40
        for c in range(8): a(f'v_mul_f32 v{SC+c}, s{sGAM+c}, v{vT+1}')
        for c in range(8): a(f'v_mov_b32 v{SH+c}, s{sBET+c}')
        for c in range(8): a(f'v_fma_f32 v{SH+c}, -v{vT}, v{SC+c}, v{SH+c}')
        for i in range(16): a(f'v_fma_f32 v{Z+i}, v{vVAL+i}, v{SC+i//2}, v{SH+i//2}')
        for i in range(16): a(f'v_mul_f32 v{E_+i}, 0xbfb8aa3b, v{Z+i}')
        for i in range(16): a(f'v_exp_f32 v{E_+i}, v{E_+i}')
        for i in range(16): a(f'v_add_f32 v{E_+i}, 1.0, v{E_+i}')
        for i in range(16): a(f'v_rcp_f32 v{E_+i}, v{E_+i}')
        for i in range(16): a(f'v_mul_f32 v{Z+i}, v{Z+i}, v{E_+i}')
        for e in range(2):
            for cp in range(4):
                a(f'v_cvt_pk_bf16_f32 v{TMP+4*e+cp}, v{Z+2*(2*cp)+e}, v{Z+2*(2*cp+1)+e}')
    def a_store(self, layer, flags=''):
        a = self.a
        a(f'''
        s_lshr_b32 s{sT}, s{sOC0}, 3
        s_add_u32 s{sT}, s{sT}, s{sWAVE}
        s_lshl_b32 s{sT}, s{sT}, 14
        s_lshl_b32 s{sT+1}, s{sB}, 20
        s_add_u32 s{sT}, s{sT}, s{sT+1}
        s_lshl_b32 s{sT+1}, s{sY0}, 9
        s_add_u32 s{sT}, s{sT}, s{sT+1}
        ''')
        if layer is None:
            a(f's_lshl_b32 s{sT+1}, s{sLAYER}, 21\n s_add_u32 s{sT}, s{sT}, s{sT+1}')
        elif layer:
            a(f's_add_u32 s{sT}, s{sT}, {layer << 21}')
        a(f'''
        v_lshrrev_b32 v{vT+2}, 4, v{vLANE}
        v_and_b32 v{vT+3}, 15, v{vLANE}
        v_lshlrev_b32 v{vT+2}, 9, v{vT+2}
        v_lshl_add_u32 v{vT+2}, v{vT+3}, 4, v{vT+2}
        buffer_store_dwordx4 v[{TMP}:{TMP+3}], v{vT+2}, s[{S_WS}:{S_WS+3}], s{sT} offen {flags}
        buffer_store_dwordx4 v[{TMP+4}:{TMP+7}], v{vT+2}, s[{S_WS}:{S_WS+3}], s{sT} offen offset:256 {flags}
        ''')

    def emb_load(self):
        a = self.a
        B = TMP + 56
        self.srd(S_A, P_T, 3072)
        self.srd(S_OUT, P_WE, 786432)
        a(f'''
        s_lshl_b32 s{sT}, s{sPXT}, 2
        s_add_u32 s{sT}, s{sT}, s{sWAVE}
        s_mul_i32 s{sT}, s{sT}, 24
        v_lshrrev_b32 v{B+12}, 4, v{vLANE}
        v_mul_u32_u24 v{B+12}, 6, v{B+12}
        v_add_u32 v{B+12}, s{sT}, v{B+12}
        s_mul_i32 s{sT+1}, s{sB}, 1536
        v_lshlrev_b32 v{B+13}, 1, v{B+12}
        buffer_load_dwordx3 v[{B+8}:{B+10}], v{B+13}, s[{S_A}:{S_A+3}], s{sT+1} offen
        v_lshlrev_b32 v{B+15}, 10, v{B+12}
        v_and_b32 v{B+14}, 15, v{vLANE}
        v_lshl_add_u32 v{B+15}, v{B+14}, 2, v{B+15}
        s_lshl_b32 s{sT+1}, s{sOC0}, 1
        s_add_u32 s{sT+2}, s{sT+1}, 3072
        ''')
        for k in range(6):
            a(f'buffer_load_dword v{B+k}, v{B+15}, s[{S_OUT}:{S_OUT+3}], s{sT+1+k//3} offen offset:{(k%3)*1024}')
    def emb_compute_publish(self, flags=''):
        a = self.a
        B = TMP + 56
        S = B + 16
        E_ = B + 24
        for k in range(6):
            src = B + 8 + k // 2
            if k % 2 == 0: a(f'v_lshlrev_b32 v{S+k}, 16, v{src}')
            else: a(f'v_and_b32 v{S+k}, 0xffff0000, v{src}')
        for k in range(6): a(f'v_mul_f32 v{E_+k}, 0xbfb8aa3b, v{S+k}')
        for k in range(6): a(f'v_exp_f32 v{E_+k}, v{E_+k}')
        for k in range(6): a(f'v_add_f32 v{E_+k}, 1.0, v{E_+k}')
        for k in range(6): a(f'v_rcp_f32 v{E_+k}, v{E_+k}')
        for k in range(6): a(f'v_mul_f32 v{S+k}, v{S+k}, v{E_+k}')
        A0, A1_ = E_ + 8, E_ + 10
        for k in range(6):
            a(f'v_lshlrev_b32 v{E_+12}, 16, v{B+k}\n v_and_b32 v{E_+13}, 0xffff0000, v{B+k}')
            if k == 0:
                a(f'v_mul_f32 v{A0}, v{E_+12}, v{S}\n v_mul_f32 v{A1_}, v{E_+13}, v{S}')
            else:
                a(f'v_fmac_f32 v{A0}, v{E_+12}, v{S+k}\n v_fmac_f32 v{A1_}, v{E_+13}, v{S+k}')
        for sw in ('v_permlane32_swap_b32', 'v_permlane16_swap_b32'):
            a(f'''
            v_mov_b32 v{E_+12}, v{A0}
            v_mov_b32 v{E_+13}, v{A1_}
            {sw} v{E_+12}, v{A0}
            {sw} v{E_+13}, v{A1_}
            v_add_f32 v{A0}, v{A0}, v{E_+12}
            v_add_f32 v{A1_}, v{A1_}, v{E_+13}
            ''')
        a(f'''
        v_mov_b32 v{A0+1}, s{sTAG}
        v_mov_b32 v{A1_+1}, s{sTAG}
        s_lshl_b32 s{sT}, s{sB}, 4
        s_lshr_b32 s{sT+1}, s{sOC0}, 5
        s_add_u32 s{sT}, s{sT}, s{sT+1}
        s_lshl_b32 s{sT}, s{sT}, 13
        s_lshl_b32 s{sT+1}, s{sPXT}, 2
        s_add_u32 s{sT+1}, s{sT+1}, s{sWAVE}
        s_lshl_b32 s{sT+1}, s{sT+1}, 4
        s_add_u32 s{sT}, s{sT}, s{sT+1}
        s_add_u32 s{sT}, s{sT}, {WS_EMB}
        v_lshlrev_b32 v{E_+12}, 9, v{vLANE}
        s_mov_b64 exec, 0xffff
        buffer_store_dwordx4 v[{A0}:{A0+3}], v{E_+12}, s[{S_WS}:{S_WS+3}], s{sT} offen {flags}
        s_mov_b64 exec, -1
        ''')
    def emb_gather_addr(self, base):
        self.a(f'''
        s_lshl_b32 s{sT+8}, s{sB}, 4
        s_lshr_b32 s{sT+1}, s{sOC0}, 5
        s_add_u32 s{sT+8}, s{sT+8}, s{sT+1}
        s_lshl_b32 s{sT+8}, s{sT+8}, 13
        s_lshl_b32 s{sT+1}, s{sWAVE}, 11
        s_add_u32 s{sT+8}, s{sT+8}, s{sT+1}
        s_add_u32 s{sT+8}, s{sT+8}, {WS_EMB}
        v_lshlrev_b32 v{base+8}, 4, v{vLANE}
        ''')
    def emb_gather_issue(self, base, flags=''):
        self.a(f'''
        buffer_load_dwordx4 v[{base}:{base+3}], v{base+8}, s[{S_WS}:{S_WS+3}], s{sT+8} offen {flags}
        buffer_load_dwordx4 v[{base+4}:{base+7}], v{base+8}, s[{S_WS}:{S_WS+3}], s{sT+8} offen offset:1024 {flags}
        ''')
    def emb_gather_reduce(self, base):
        self.wave_reduce([base, base+2, base+4, base+6], full=False)
        for q in range(2):
            for ps in range(2):
                for e in range(2):
                    self.a(f'v_readlane_b32 s{sEMB + 4*q + 2*ps + e}, v{base + 4*q + 2*e}, {31 + 32*ps}')

    def conv_addr_dma(self):
        t = vT
        self.a(f'''
        s_and_b32 s{sT}, s{sWAVE}, 1
        s_lshl_b32 s{sT}, s{sT}, 3
        v_lshrrev_b32 v{t}, 3, v{vLANE}
        v_add_u32 v{t}, s{sT}, v{t}
        v_lshrrev_b32 v{t+1}, 1, v{t}
        v_lshrrev_b32 v{t+2}, 3, v{t}
        v_xor_b32 v{t+2}, v{t+2}, v{t}
        v_and_b32 v{t+2}, 1, v{t+2}
        v_lshl_add_u32 v{t+2}, v{t+2}, 3, v{t+1}
        v_and_b32 v{t+3}, 7, v{vLANE}
        v_xor_b32 v{t+3}, v{t+3}, v{t+1}
        v_mul_u32_u24 v{vDMA[0]}, 9216, v{t+2}
        v_lshl_add_u32 v{vDMA[0]}, v{t+3}, 4, v{vDMA[0]}
        s_lshr_b32 s{sT+1}, s{sWAVE}, 1
        s_mul_i32 s{sT+2}, s{sT+1}, 1152
        s_add_u32 s{sT+2}, s{sT+2}, 4096
        v_add_u32 v{vDMA[0]}, s{sT+2}, v{vDMA[0]}
        s_mul_i32 s{sW0}, s{sOC0}, 9216
        s_add_u32 s{sW0}, s{sW0}, 4096
        s_mul_i32 s{sWOFF}, s{sWAVE}, 9216
        s_mov_b32 s{S_W+3}, 0x00020000
        ''')
        for k in range(1, 9):
            self.a(f'v_add_u32 v{vDMA[k]}, {128*k - 1024*(k%4)}, v{vDMA[0]}')
    def w_srd(self, ptr):
        return [f's_sub_u32 s{S_W}, s{ptr}, 8192', f's_subb_u32 s{S_W+1}, s{ptr+1}, 0']
    WREC = 4718592 + 8192
    def dma_op(self, k, slot):
        ops = []
        if k % 4 == 0: ops.append(f's_add_u32 m0, s{sWOFF}, {slot*SLOT + 1024*k}')
        ops.append(f'buffer_load_dwordx4 v{vDMA[k]}, s[{S_W}:{S_W+3}], s{sSOFW} offen offset:{1024*(k%4)} lds')
        return ops
    UOFF = [0, 147456, 2304, 149760]
    def dma_unit(self, slot, soff_base, uoff):
        self.a(f's_add_u32 s{sSOFW}, s{soff_base}, {uoff}')
        for k in range(9):
            for o in self.dma_op(k, slot): self.a(o)
    def conv_addr_rd(self):
        a = self.a
        t = vT
        a(f'''
        v_and_b32 v{t}, 15, v{vLANE}
        v_lshrrev_b32 v{t+1}, 2, v{t}
        v_lshrrev_b32 v{t+2}, 3, v{t}
        v_xor_b32 v{t+1}, v{t+1}, v{t+2}
        v_and_b32 v{t+1}, 1, v{t+1}
        v_and_b32 v{t+2}, 7, v{t}
        v_lshl_add_u32 v{t+1}, v{t+2}, 1, v{t+1}
        v_lshrrev_b32 v{t+7}, 3, v{t+1}
        v_mul_u32_u24 v{t+7}, 9216, v{t+7}
        v_and_b32 v{t+1}, 7, v{t+1}
        v_lshl_add_u32 v{t+1}, v{t+1}, 7, v{t+7}
        s_lshr_b32 s{sT+1}, s{sWAVE}, 1
        s_mul_i32 s{sT+2}, s{sT+1}, {18432 - 9216}
        v_add_u32 v{t+1}, s{sT+2}, v{t+1}
        v_lshrrev_b32 v{t+3}, 4, v{vLANE}
        v_mul_u32_u24 v{t+4}, 9, v{t+3}
        s_mul_i32 s{sT}, s{sWAVE}, 36
        v_add_u32 v{t+4}, s{sT}, v{t+4}
        ''')
        for j in range(8):
            a(f'''
            v_add_u32 v{t+5}, {j}, v{t+4}
            v_lshrrev_b32 v{t+6}, 3, v{t+5}
            v_and_b32 v{t+5}, 7, v{t+5}
            v_xor_b32 v{t+5}, v{t+5}, v{t+2}
            v_lshl_add_u32 v{t+6}, v{t+6}, 10, v{t+1}
            v_lshl_add_u32 v{vRD+j}, v{t+5}, 4, v{t+6}
            v_add_u32 v{vRD2+j}, {2*SLOT}, v{vRD+j}
            ''')
    def conv_addr_act(self):
        t = vT
        self.a(f'''
        v_and_b32 v{t}, 15, v{vLANE}
        v_lshrrev_b32 v{t+3}, 4, v{vLANE}
        v_lshlrev_b32 v{vACT}, 4, v{t}
        v_lshl_add_u32 v{vACT}, v{t+3}, 14, v{vACT}
        s_lshl_b32 s{sT}, s{sWAVE}, 16
        s_lshl_b32 s{sT+1}, s{sY0}, 9
        s_add_u32 s{sT}, s{sT}, s{sT+1}
        v_add_u32 v{vACT}, s{sT}, v{vACT}
        s_cmp_eq_u32 s{sPXT}, 0
        s_cselect_b32 s{sT}, 0x40000000, -512
        v_add_u32 v{vTOP}, s{sT}, v{vACT}
        s_cmp_eq_u32 s{sPXT}, 7
        s_cselect_b32 s{sT}, 0x40000000, 2048
        v_add_u32 v{vBOT}, s{sT}, v{vACT}
        ''')
    def act_op(self, R, j, e, flags=''):
        if j == 0: ad, off = vTOP, 0
        elif j == 5: ad, off = vBOT, 0
        else: ad, off = vACT, (j - 1) * 512
        return f'buffer_load_dwordx4 {r4(R+8*j+4*e)}, v{ad}, s[{S_A}:{S_A+3}], s{sSOFA} offen offset:{off + 256*e} {flags}'
    def raw_reads(self, slot):
        base = vRD if slot < 2 else vRD2
        off = (slot % 2) * SLOT
        return [f'ds_read_b128 {r4(vRAW+4*j)}, v{base + (j % 8)} offset:{off + (1024 if j == 8 else 0)}' for j in range(9)]
    def perms(self, kx):
        ops = []
        for ky in range(3):
            t = 3 * ky + kx
            for m in range(4):
                aidx = (18 * m + t) // 2; bidx = (18 * m + 9 + t) // 2
                sel = sSELE if t % 2 == 0 else sSELO
                ops.append(f'v_perm_b32 v{vF+4*t+m}, v{vRAW+bidx}, v{vRAW+aidx}, s{sel}')
        return ops
    def shifts(self, R, plus):
        ops = []
        for j in range(6):
            for i in range(4):
                if plus: ops.append(f'v_mov_b32_dpp v{vS+24+4*j+i}, v{R+8*j+i} row_shl:1 row_mask:0xf bank_mask:0xf bound_ctrl:0')
                else: ops.append(f'v_mov_b32_dpp v{vS+4*j+i}, v{R+8*j+4+i} row_shr:1 row_mask:0xf bank_mask:0xf bound_ctrl:0')
        return ops
    def mfmas(self, ob, R):
        ops = []
        for kx in (1, 0, 2):
            for ky in range(3):
                eorder = (0, 1) if kx == 1 else ((1, 0) if kx == 0 else (0, 1))
                for e in eorder:
                    for i in range(4):
                        j = i + ky
                        if kx == 1: X = R + 8*j + 4*e
                        elif kx == 0: X = (R + 8*j) if e == 1 else (vS + 4*j)
                        else: X = (R + 8*j + 4) if e == 0 else (vS + 24 + 4*j)
                        acc = 32*ob + 8*i + 4*e
                        ops.append(f'v_mfma_f32_16x16x32_bf16 a[{acc}:{acc+3}], {r4(vF+4*(3*ky+kx))}, {r4(X)}, a[{acc}:{acc+3}]')
        return ops

    def body_stream(self, aflags=''):
        NG = 288
        chains = []
        def chain(items): chains.append(list(items))
        def lin(ops, g0, g1, cost=1, slack=6):
            n = len(ops)
            return [([o] if isinstance(o, str) else o, g0 + (k * (g1 - g0)) // n, min(g0 + (k * (g1 - g0)) // n + slack, g1), cost) for k, o in enumerate(ops)]
        for st in range(4):
            g = 72 * st
            rs = (st + 1) % 4
            c = lin(self.perms(2), g, g + 7, slack=2)
            c += [(['@BAR'], g + 7, g + 8, 1)]
            c += lin(self.raw_reads(rs), g + 8, g + 17, slack=3)
            c += [(['s_waitcnt lgkmcnt(0)'], g + 26, g + 28, 1)]
            c += lin(self.perms(1), g + 26, g + 47, slack=6)
            c += lin(self.perms(0), g + 48, g + 71, slack=6)
            chain(c)
        for P in range(2):
            g = 144 * P
            R, RN = vR[P], vR[1 - P]
            chain(lin(self.shifts(R, False), g + 2, g + 27, slack=4) + lin(self.shifts(R, True), g + 27, g + 51, slack=4))
        vm = []
        acts = [(j, e) for j in range(6) for e in range(2)]
        pat = ['ADADADADADADADA', 'ADADAADDDDDDDDD']
        dk = 0
        for P in range(2):
            RN = vR[1 - P]
            ai = 0
            for ob in range(2):
                g = 144 * P + 72 * ob
                for idx, ch in enumerate(pat[ob]):
                    gpos = g + 9 + (idx * 62) // 15
                    if ch == 'A':
                        pre = []
                        if ai == 0:
                            pre = [f's_mov_b32 s{S_A+2}, {1<<20}'] if P == 0 else [f's_mov_b32 s{S_A+2}, s{sAREC1}']
                            vm.append((pre, gpos - 2, gpos, 1))
                        j, e = acts[ai]
                        vm.append(([self.act_op(RN, j, e, aflags)], gpos, gpos + 3, 3)); ai += 1
                        if ai == 12: vm.append(([f's_add_u32 s{sSOFA}, s{sSOFA}, 262144'], gpos, gpos + 4, 1))
                    else:
                        u, k = divmod(dk, 9)
                        if k == 0:
                            if u == 0: vm.append(([f's_mov_b32 s{S_W+2}, s{sRECA}'], gpos - 3, gpos, 1))
                            if u == 2: vm.append(([f's_mov_b32 s{S_W+2}, s{sRECB}'], gpos - 3, gpos, 1))
                            if u > 0: vm.append(([f's_add_u32 s{sSOFW}, s{sSOFW}, {self.UOFF[u] - self.UOFF[u-1]}'], gpos - 3, gpos, 1))
                        for o in self.dma_op(k, u):
                            if o.startswith('s_'): vm.append(([o], gpos - 2, gpos, 1))
                            else: vm.append(([o], gpos, gpos + 3, 3))
                        dk += 1
        assert dk == 36
        chain(vm)
        heads = [0] * len(chains)
        gaps = [[] for _ in range(NG)]
        debt = 0
        CAP = 2
        for gi in range(NG):
            cap = CAP - debt; debt = 0
            while True:
                cand = [(chains[c][heads[c]][2], c) for c in range(len(chains)) if heads[c] < len(chains[c]) and chains[c][heads[c]][1] <= gi]
                if not cand: break
                cand.sort()
                dl, c = cand[0]
                ops, e_, l_, cost = chains[c][heads[c]]
                if cap <= 0 and dl > gi: break
                gaps[gi] += ops; heads[c] += 1; cap -= cost
            if cap < 0: debt = min(-cap, 2)
        for c in range(len(chains)): assert heads[c] == len(chains[c]), 'unscheduled'
        mf = []
        for st in range(4): mf += self.mfmas(st & 1, vR[st >> 1])
        out = []
        for i, m in enumerate(mf):
            out.append(m); out += gaps[i]
        self.gap_hist = [len(x) for x in gaps]
        if 'novm' in EXP: out = [o for o in out if not o.startswith('buffer_load')]
        return out

    def loop_consts(self):
        return [
            f's_cmp_eq_u32 s{sQ}, 0',
            f's_cselect_b32 s{sT}, s{P_W1}, s{P_W2}',
            f's_cselect_b32 s{sT+1}, s{P_W1+1}, s{P_W2+1}',
            f's_sub_u32 s{S_W}, s{sT}, 8192',
            f's_subb_u32 s{S_W+1}, s{sT+1}, 0',
            f's_cmp_lt_u32 s{sQ}, 3',
            f's_cselect_b32 s{sRECA}, {self.WREC}, 0',
            f's_bitcmp0_b32 s{sQ}, 0',
            f's_cselect_b32 s{sRECB}, {self.WREC}, 0',
            f's_cselect_b32 s{sAREC1}, {1<<20}, 0',
            f's_cselect_b32 s{sT}, 4608, 0',
            f's_add_u32 s{sSOFW}, s{sW0}, s{sT}',
        ]

    def verify_body(self, body):
        import re
        if EXP & {'novm'}: return
        val = {}
        nm = 0; nraw = 0; nact = 0
        for rep in range(3):
            for o in body:
                if o == '@BAR': continue
                ins = Ins(o)
                if ins.mn.startswith('ds_read'):
                    unit = nraw // 9 + 1; j = nraw % 9; nraw += 1
                    for i, r in enumerate(sorted(ins.wr)): val[r] = ('raw', unit, 4*j + i)
                elif ins.mn == 'v_perm_b32':
                    d = int(ins.ops[0][1:]); b_ = val.get(('v', int(ins.ops[1][1:]))); a_ = val.get(('v', int(ins.ops[2][1:])))
                    t, m = divmod(d - vF, 4)
                    if a_ and b_:
                        assert a_[1] == b_[1] and a_[2] == (18*m+t)//2 and b_[2] == (18*m+9+t)//2
                        val[('v', d)] = ('F', a_[1], t)
                    else: val[('v', d)] = None
                elif ins.kind == 'vmem' and not ins.lds_dma:
                    ss = nact // 12 + 1; j, e = divmod(nact % 12, 2); nact += 1
                    for r in ins.wr: val[r] = ('R', ss, j, e)
                elif ins.mn.startswith('v_mov_b32_dpp'):
                    d = int(ins.ops[0][1:]); src = val.get(('v', int(ins.ops[1].split()[0][1:])))
                    val[('v', d)] = ('S',) + src[1:] if src else None
                elif ins.kind == 'mfma':
                    step = nm // 72; k = nm % 72; nm += 1
                    kx = (1, 0, 2)[k // 24]; ky = (k % 24) // 8
                    fa = {val.get(r) for r in regs_of(ins.ops[1])}; xb = {val.get(r) for r in regs_of(ins.ops[2])}
                    if rep >= 1:
                        assert fa == {('F', step, 3*ky+kx)}, (o, fa, step)
                        assert len(xb) == 1 and list(xb)[0][1] == step // 2, (o, xb, step)
    def conv_loop(self, aflags=''):
        a = self.a
        body = self.body_stream(aflags)
        waits = {}
        issued = []
        grp = -1
        step = 0
        for rep in range(3):
            w_rep = {}
            for pos, o in enumerate(body):
                need_idx = -1
                if o == '@BAR':
                    want = step + 1 - 4
                    for k, (tag, regs) in enumerate(issued):
                        if tag == ('dma', want): need_idx = k
                    step += 1
                else:
                    ins = Ins(o)
                    touched = ins.rd | ins.wr
                    if ins.kind != 'vmem':
                        for k, (tag, regs) in enumerate(issued):
                            if regs & touched: need_idx = k
                if need_idx >= 0:
                    w_rep[pos] = len(issued) - 1 - need_idx
                    issued = issued[need_idx + 1:]
                if o != '@BAR':
                    ins = Ins(o)
                    if ins.kind == 'vmem':
                        if ins.lds_dma:
                            if f'v{vDMA[0]},' in o: grp += 1
                            issued.append((('dma', grp), set()))
                        else:
                            issued.append((('ld', 0), set(ins.wr)))
            waits[rep] = w_rep
        assert waits[1] == waits[2], 'not periodic'
        W = waits[2]
        self.verify_body(body)
        L = self.lbl('conv')
        a.label(L)
        for o in self.loop_consts(): a(o)
        for pos, o in enumerate(body):
            if pos in W and 'nowait' not in EXP:
                assert W[pos] < 64
                a(f's_waitcnt vmcnt({W[pos]})')
            a('s_barrier' if o == '@BAR' else o)
        a(f's_add_u32 s{sQ}, s{sQ}, 1')
        a(f's_bitcmp1_b32 s{sQ}, 0')
        a(f's_cbranch_scc1 {L}')
        a.check_backedge(L)

    def first_frags(self):
        a = self.a
        for o in self.raw_reads(0): a(o)
        a('s_waitcnt lgkmcnt(0)')
        for o in self.perms(1) + self.perms(0): a(o)
    def zero_acc(self):
        for i in range(64): self.a(f'v_accvgpr_write_b32 a{i}, 0')
    def first_acts(self, aflags=''):
        a = self.a
        a(f's_mov_b32 s{sSOFA}, 0\n s_mov_b32 s{S_A+2}, {1<<20}')
        for j in range(6):
            for e in range(2):
                a(self.act_op(vR[0], j, e, aflags))
        a(f's_mov_b32 s{sSOFA}, 262144')

    def reduce_addr(self, scratch):
        a = self.a
        t = vT
        REC, SRC = 2112, 16896
        a(f'''
        v_and_b32 v{t}, 15, v{vLANE}
        v_lshrrev_b32 v{t+1}, 4, v{vLANE}
        v_and_b32 v{t+2}, 7, v{t}
        v_xor_b32 v{t+3}, v{t+2}, v{t+1}
        s_mul_i32 s{sT}, s{sWAVE}, {SRC}
        s_add_u32 s{sT}, s{sT}, {scratch}
        v_lshlrev_b32 v{t+6}, 7, v{t}
        v_add_u32 v{t+7}, s{sT}, v{t+6}
        v_lshl_add_u32 v{t+4}, v{t+3}, 4, v{t+7}
        v_xor_b32 v{t+3}, 4, v{t+3}
        v_lshl_add_u32 v{t+5}, v{t+3}, 4, v{t+7}
        v_mul_u32_u24 v{t+1}, {2*REC}, v{t+1}
        v_add_u32 v{t+1}, v{t+1}, v{t+6}
        v_add_u32 v{t+1}, {scratch}, v{t+1}
        s_lshl_b32 s{sT}, s{sWAVE}, 1
        v_xor_b32 v{t+2}, s{sT}, v{t+2}
        v_lshl_add_u32 v{t+8}, v{t+2}, 4, v{t+1}
        v_xor_b32 v{t+2}, 1, v{t+2}
        v_lshl_add_u32 v{t+9}, v{t+2}, 4, v{t+1}
        ''')
    def conv_reduce(self, scratch, vm=0):
        a = self.a
        t = vT
        REC, SRC = 2112, 16896
        self.reduce_addr(scratch)
        a(f's_waitcnt vmcnt({vm}) lgkmcnt(0)')
        a('s_barrier')
        for ob in range(2):
            for i in range(4):
                for e in range(2):
                    acc = 32*ob + 8*i + 4*e
                    a(f'ds_write_b128 v{t+4+ob}, a[{acc}:{acc+3}] offset:{(2*i+e)*REC}')
        a('s_waitcnt lgkmcnt(0)')
        a('s_barrier')
        RB = TMP
        for src in range(4):
            for e in range(2):
                for hh in range(2):
                    a(f'ds_read_b128 {r4(RB + 16*src + 4*(2*e+hh))}, v{t+8+hh} offset:{src*SRC + e*REC}')
        for src in range(1, 4):
            a(f's_waitcnt lgkmcnt({12 - 4*src})')
            for e in range(2):
                for hh in range(2):
                    for tt in range(4):
                        c = 4 * hh + tt
                        acc = RB + 4*(2*e+hh) + tt
                        dst = vVAL + 2*c + e if src == 3 else acc
                        a(f'v_add_f32 v{dst}, v{acc}, v{RB + 16*src + 4*(2*e+hh) + tt}')
    def out_store(self):
        a = self.a
        so = self.xsoffs()
        for c in range(8):
            a(f'''
            v_lshlrev_b32 v{TMP+2*c}, 16, v{vXPK+c}
            v_and_b32 v{TMP+2*c+1}, 0xffff0000, v{vXPK+c}
            v_add_f32 v{TMP+2*c}, v{TMP+2*c}, v{vVAL+2*c}
            v_add_f32 v{TMP+2*c+1}, v{TMP+2*c+1}, v{vVAL+2*c+1}
            v_cvt_pk_bf16_f32 v{TMP+16+c}, v{TMP+2*c}, v{TMP+2*c+1}
            buffer_store_dword v{TMP+16+c}, v{vXA}, s[{S_OUT}:{S_OUT+3}], {so[c//2]} offen offset:{(c%2)*2048}
            ''')
    def begin_kernel(self, name):
        self.a.raw(f'.globl {name}\n.p2align 8\n.type {name},@function\n{name}:')
    def end_kernel(self, exit_label):
        self.a.label(exit_label)
        self.a('s_endpgm')

def kd(name, vgpr, agpr, sgpr=102):
    acc = (vgpr + 3) // 4 * 4
    return f""".p2align 6
.amdhsa_kernel {name}
  .amdhsa_next_free_vgpr {acc + agpr}
  .amdhsa_next_free_sgpr {sgpr}
  .amdhsa_accum_offset {acc}
  .amdhsa_group_segment_fixed_size 0
  .amdhsa_kernarg_size 96
  .amdhsa_user_sgpr_count 2
  .amdhsa_user_sgpr_kernarg_segment_ptr 1
  .amdhsa_system_sgpr_workgroup_id_x 1
.end_amdhsa_kernel
"""

def h_addr(g):
    g.a(f'''
    s_lshl_b32 s{sT+5}, s2, 14
    s_add_u32 s{sT+5}, s{sT+5}, {WS_H}
    v_lshlrev_b32 v{vT+14}, 6, v0
    ''')

def conv_standalone(g, layer):
    a = g.a
    g.conv_addr_dma()
    for o in g.w_srd(P_W1 if layer == 0 else P_W2): a(o)
    a(f's_mov_b32 s{S_W+2}, {g.WREC}')
    for u in range(4): g.dma_unit(u, sW0, g.UOFF[u])
    if layer == 0:
        a(f's_mov_b32 s{P_W2}, s{P_W1}\n s_mov_b32 s{P_W2+1}, s{P_W1+1}')
    a(f's_mov_b32 s{sQ}, 2')
    a(f's_lshl_b32 s{sT+4}, s{sB}, 20')
    g.srd(S_A, P_WS, 1 << 20, add_sgpr=sT + 4, add_imm=layer << 21)
    g.conv_addr_act(); g.first_acts()
    g.conv_addr_rd(); g.zero_acc()
    a('s_waitcnt vmcnt(0)'); a('s_barrier')
    g.first_frags()
    g.stamp(2); g.stamp(8, True)
    g.conv_loop()
    g.stamp(3); g.stamp(9, True)

def gen_baseline():
    g = Gen(); a = g.a
    names = ['ka_kernel', 'kb_kernel', 'kc_kernel', 'kd_kernel', 'ke_kernel']
    lds = [0, 0, LDS_BYTES, 0, LDS_BYTES]
    hdr = ''.join(f'; @launch kernel={n} grid=(256,1,1) block=(256,1,1) lds={l}\n' for n, l in zip(names, lds))
    hdr += '.amdgcn_target "amdgcn-amd-amdhsa--gfx950"\n.text\n'
    def begin(ch):
        g.begin_kernel(f'k{ch}_kernel'); g.stamp(0); g.setup(f'L_exit_{ch}'); a('s_waitcnt lgkmcnt(0)'); g.stamp(1)
    def end(ch, k):
        if STAMPS: a('s_waitcnt vmcnt(0)')
        g.stamp(7); g.stamp_flush(k); g.end_kernel(f'L_exit_{ch}')
    begin('a')
    g.srd(S_X, P_X, 2 << 20); g.srd(S_WS, P_WS, WS_SIZE)
    g.xtile_addr(); g.xtile_load()
    g.emb_load()
    a('s_waitcnt vmcnt(7)')
    g.xtile_unpack(); g.wave_stats(); g.stats_publish(0)
    a('s_waitcnt vmcnt(1)')
    g.emb_compute_publish()
    end('a', 0)
    begin('b')
    g.srd(S_X, P_X, 2 << 20); g.srd(S_WS, P_WS, WS_SIZE)
    g.xtile_addr(); g.xtile_load()
    g.stat_base(sT + 8, 0); a(f'v_lshlrev_b32 v{vT+15}, 4, v{vLANE}'); g.stats_load_issue()
    g.load_gb(P_G1, P_B1); g.unpack_gb()
    a('s_waitcnt vmcnt(0)')
    g.xtile_unpack(); g.stats_combine(); g.norm_silu_pack(); g.a_store(0)
    end('b', 1)
    begin('c')
    g.srd(S_WS, P_WS, WS_SIZE)
    conv_standalone(g, 0)
    a('s_waitcnt vmcnt(0)')
    g.emb_gather_addr(TMP + 64); g.emb_gather_issue(TMP + 64)
    g.conv_reduce(2 * SLOT, vm=2); g.stamp(4)
    a('s_waitcnt vmcnt(0)')
    g.emb_gather_reduce(TMP + 64)
    for c in range(8):
        a(f'v_add_f32 v{vVAL+2*c}, s{sEMB+c}, v{vVAL+2*c}\n v_add_f32 v{vVAL+2*c+1}, s{sEMB+c}, v{vVAL+2*c+1}')
    g.wave_stats(); g.stats_publish(1)
    h_addr(g)
    for i in range(4):
        a(f'buffer_store_dwordx4 {r4(vVAL+4*i)}, v{vT+14}, s[{S_WS}:{S_WS+3}], s{sT+5} offen offset:{16*i}')
    end('c', 2)
    begin('d')
    g.srd(S_WS, P_WS, WS_SIZE)
    h_addr(g)
    for i in range(4):
        a(f'buffer_load_dwordx4 {r4(vVAL+4*i)}, v{vT+14}, s[{S_WS}:{S_WS+3}], s{sT+5} offen offset:{16*i}')
    g.stat_base(sT + 8, 1); a(f'v_lshlrev_b32 v{vT+15}, 4, v{vLANE}'); g.stats_load_issue()
    g.load_gb(P_G2, P_B2); g.unpack_gb()
    a('s_waitcnt vmcnt(0)')
    g.stats_combine(); g.norm_silu_pack(); g.a_store(1)
    end('d', 3)
    begin('e')
    g.srd(S_X, P_X, 2 << 20); g.srd(S_OUT, P_OUT, 2 << 20)
    conv_standalone(g, 1)
    g.xtile_addr(); g.xtile_load()
    g.conv_reduce(2 * SLOT, vm=8); g.stamp(4)
    a('s_waitcnt vmcnt(0)')
    g.out_store()
    end('e', 4)
    txt = hdr + a.text() + '.section .rodata,"a"\n'
    for n in names:
        txt += kd(n, NVGPR, 64)
    return txt

COMM = DUMMY + 8192

def gen_fused():
    g = Gen(); a = g.a
    name = 'standalone__adm_resblock__diffusion_kernel'
    hdr = f'; @launch grid=(256,1,1) block=(256,1,1) lds={LDS_BYTES}\n'
    hdr += '.amdgcn_target "amdgcn-amd-amdhsa--gfx950"\n.text\n'
    SC = 'sc1'
    t = vT
    SLP = 's_sleep 1' if 'nosleep' not in EXP else ''
    g.begin_kernel(name); g.stamp(0); g.setup('L_exit')
    g.xtile_addr()
    g.conv_addr_dma()
    a('s_waitcnt lgkmcnt(0)')
    g.stamp(1)
    g.srd(S_X, P_X, 2 << 20)
    g.xtile_load()
    a(f'''
    s_lshl_b32 s{sT}, s{sB}, 8
    s_add_u32 s{sT}, s{sT}, {WS_EPOCH}
    s_add_u32 s{sT+1}, s{P_WS}, s{sT}
    s_addc_u32 s{sT+2}, s{P_WS+1}, 0
    s_load_dword s{sTAG}, s[{sT+1}:{sT+2}], 0
    ''')
    g.srd(S_WS, P_WS, WS_SIZE)
    ntlb = 0
    if 'tlb' in EXP:
        a(f'''
        v_lshlrev_b32 v{t}, 20, v{vLANE}
        s_mov_b64 exec, 0x3ff
        buffer_load_dword v{TMP+50}, v{t}, s[{S_WS}:{S_WS+3}], 0 offen
        s_mov_b64 exec, -1
        ''')
        ntlb = 1
    g.emb_load()
    def warm(ptr, k0, k1):
        for o in g.w_srd(ptr): a(o)
        a(f'''
        s_mov_b32 s{S_W+2}, {g.WREC}
        s_lshl_b32 s{sT}, s{sPXT}, 2
        s_add_u32 s{sT}, s{sT}, s{sWAVE}
        s_add_u32 s{sT}, s{sT}, s{sOC0}
        s_mul_i32 s{sT}, s{sT}, 9216
        s_add_u32 s{sT}, s{sT}, {8192 + k0}
        v_lshlrev_b32 v{t+14}, 4, v{vLANE}
        s_mov_b32 m0, {DUMMY}
        ''')
        n = (k1 - k0 + 1023) // 1024
        for k in range(n):
            if k and k % 4 == 0: a(f's_add_u32 s{sT}, s{sT}, 4096')
            a(f'buffer_load_dwordx4 v{t+14}, s[{S_W}:{S_W+3}], s{sT} offen offset:{1024*(k%4)} lds')
        return n
    nw = warm(P_W1, 0, 9216)
    g.load_gb(P_G1, P_B1)
    g.conv_addr_rd(); g.conv_addr_act(); g.zero_acc()
    a(f's_mov_b32 s{sLAYER}, 0\n s_mov_b32 s{sQ}, 0')
    g.unpack_gb()
    a(f's_add_u32 s{sTAG}, s{sTAG}, 1')
    a(f's_waitcnt vmcnt({ntlb + 7 + nw})')
    g.stamp(2)
    g.xtile_unpack()

    def bulk_units(u0):
        Ls = g.lbl('bulk')
        a(f's_mov_b32 s{S_W+2}, {g.WREC}')
        for u in (u0, u0 + 1): g.dma_unit(u, sW0, g.UOFF[u])
        a(f's_cmp_lg_u32 s{sWAVE}, 2\n s_cbranch_scc1 {Ls}')
        a(f's_sub_u32 s{sT+5}, s{sW0}, 1152\n s_sub_u32 s{sWOFF}, s{sWOFF}, 18432')
        for u in (u0, u0 + 1): g.dma_unit(u, sT + 5, g.UOFF[u])
        a(f's_add_u32 s{sWOFF}, s{sWOFF}, 18432')
        a.label(Ls)

    a.label('L_layer')
    g.wave_stats()
    a(f'''
    v_mov_b32 v{t+5}, v{t+6}
    s_lshl_b32 s{sT}, s{sWAVE}, 3
    s_add_u32 s{sT}, s{sT}, {COMM}
    v_mov_b32 v{t}, s{sT}
    ds_write_b64 v{t}, v[{t+4}:{t+5}]
    v_and_b32 v{t+1}, 3, v{vLANE}
    v_lshlrev_b32 v{t+1}, 3, v{t+1}
    v_add_u32 v{t+1}, {COMM}, v{t+1}
    v_and_b32 v{t+15}, 31, v{vLANE}
    v_lshlrev_b32 v{t+14}, 7, v{t+15}
    v_lshlrev_b32 v{t+15}, 4, v{t+15}
    s_waitcnt lgkmcnt(0)
    s_barrier
    s_cmp_lg_u32 s{sWAVE}, 0
    s_cbranch_scc1 L_st_nopub
    ds_read_b64 v[{t+4}:{t+5}], v{t+1}
    ''')
    g.stat_base(sT + 8, None)
    a(f'''
    s_lshr_b32 s{sT+1}, s2, 3
    s_lshl_b32 s{sT+1}, s{sT+1}, 4
    s_add_u32 s{sT+2}, s{sT+8}, s{sT+1}
    s_sub_u32 s1, s{sT+8}, {WS_STAT}
    s_lshl_b32 s1, s1, 1
    s_add_u32 s1, s1, {WS_STATB}
    s_lshl_b32 s{sT+1}, s{sT+1}, 3
    s_add_u32 s{sT+3}, s1, s{sT+1}
    s_waitcnt lgkmcnt(0)
    v_readfirstlane_b32 s{sT}, v{t+4}
    v_subrev_f32 v{t}, s{sT}, v{t+4}
    v_mul_f32 v{t+1}, v{t}, v{t}
    v_add_f32_dpp v{t}, v{t}, v{t} quad_perm:[1,0,3,2] row_mask:0xf bank_mask:0xf
    v_add_f32_dpp v{t+5}, v{t+5}, v{t+5} quad_perm:[1,0,3,2] row_mask:0xf bank_mask:0xf
    v_add_f32_dpp v{t+1}, v{t+1}, v{t+1} quad_perm:[1,0,3,2] row_mask:0xf bank_mask:0xf
    v_add_f32_dpp v{t}, v{t}, v{t} quad_perm:[2,3,0,1] row_mask:0xf bank_mask:0xf
    v_add_f32_dpp v{t+5}, v{t+5}, v{t+5} quad_perm:[2,3,0,1] row_mask:0xf bank_mask:0xf
    v_add_f32_dpp v{t+1}, v{t+1}, v{t+1} quad_perm:[2,3,0,1] row_mask:0xf bank_mask:0xf
    v_mul_f32 v{t+2}, 0x3e800000, v{t}
    v_add_f32 v{t+4}, s{sT}, v{t+2}
    v_fma_f32 v{t+1}, -v{t}, v{t+2}, v{t+1}
    v_fmac_f32 v{t+5}, 0x44800000, v{t+1}
    v_mov_b32 v{t+6}, v{t+5}
    v_mov_b32 v{t+5}, s{sTAG}
    v_mov_b32 v{t+7}, s{sTAG}
    v_mov_b32 v{t}, 0
    s_mov_b64 exec, 1
    ''')
    a(f'''
    buffer_store_dwordx4 v[{t+4}:{t+7}], v{t}, s[{S_WS}:{S_WS+3}], s{sT+2} offen
    buffer_store_dwordx4 v[{t+4}:{t+7}], v{t}, s[{S_WS}:{S_WS+3}], s{sT+3} offen {SC}
    s_mov_b64 exec, -1
    ''')
    a.label('L_st_nopub')
    g.stamp_l(3)
    a(f's_cmp_lg_u32 s{sLAYER}, 0\n s_cbranch_scc1 L_noemb')
    a(f's_waitcnt vmcnt({nw})')
    g.emb_compute_publish(SC)
    a.label('L_noemb')
    a(f's_cmp_lg_u32 s{sWAVE}, 0\n s_cbranch_scc1 L_st_other')
    a(f's_mov_b32 s{sT+6}, 0')
    a.label('L_pstat')
    a(f'''
    buffer_load_dwordx4 v[{t+8}:{t+11}], v{t+15}, s[{S_WS}:{S_WS+3}], s{sT+8} offen {SC}
    s_waitcnt vmcnt(0)
    v_cmp_ne_u32 vcc, s{sTAG}, v{t+9}
    v_cmp_ne_u32_e64 s[52:53], s{sTAG}, v{t+11}
    s_or_b64 vcc, vcc, s[52:53]
    s_cmp_eq_u64 vcc, 0
    s_cbranch_scc1 L_pstat_done
    s_add_u32 s{sT+6}, s{sT+6}, 1
    s_and_b32 s{sT}, s{sT+6}, 7
    s_cmp_lg_u32 s{sT}, 0
    s_cbranch_scc1 L_pstat
    buffer_load_dwordx4 v[{t+8}:{t+11}], v{t+14}, s[{S_WS}:{S_WS+3}], s1 offen {SC}
    s_waitcnt vmcnt(0)
    v_cmp_ne_u32 vcc, s{sTAG}, v{t+9}
    v_cmp_ne_u32_e64 s[52:53], s{sTAG}, v{t+11}
    s_or_b64 vcc, vcc, s[52:53]
    s_cmp_eq_u64 vcc, 0
    s_cbranch_scc1 L_pstat_done
    s_cmp_lt_u32 s{sT+6}, 0x100000
    s_cbranch_scc1 L_pstat
    ''')
    a.label('L_pstat_done')
    g.stamp_l(4)
    a(f'''
    v_readfirstlane_b32 s{sT}, v{t+8}
    v_subrev_f32 v{t}, s{sT}, v{t+8}
    v_mul_f32 v{t+1}, v{t}, v{t}
    ''')
    g.wave_reduce([t, t+1, t+10], full=False)
    a(f'''
    v_readlane_b32 s{sT+1}, v{t}, 31
    v_readlane_b32 s{sT+2}, v{t+1}, 31
    v_readlane_b32 s{sT+3}, v{t+10}, 31
    v_mov_b32 v{t+4}, 0x3d000000
    v_mul_f32 v{t+4}, s{sT+1}, v{t+4}
    v_add_f32 v{t}, s{sT}, v{t+4}
    v_mul_f32 v{t+5}, s{sT+1}, v{t+4}
    v_sub_f32 v{t+5}, s{sT+2}, v{t+5}
    v_mov_b32 v{t+6}, s{sT+3}
    v_fmac_f32 v{t+6}, 0x45800000, v{t+5}
    v_mov_b32 v{t+7}, 0x3727c5ac
    v_fmac_f32 v{t+7}, 0x37000000, v{t+6}
    v_rsq_f32 v{t+1}, v{t+7}
    v_mov_b32 v{t+2}, {COMM + 64}
    ds_write_b64 v{t+2}, v[{t}:{t+1}]
    s_waitcnt lgkmcnt(0)
    s_branch L_st_join
    ''')
    a.label('L_st_other')
    a(f's_cmp_lg_u32 s{sLAYER}, 0\n s_cbranch_scc1 L_st_o1')
    bulk_units(0)
    a('s_branch L_st_join')
    a.label('L_st_o1')
    bulk_units(2)
    a.label('L_st_join')
    a(f'''
    v_mov_b32 v{t+2}, {COMM + 64}
    s_barrier
    ds_read_b64 v[{t}:{t+1}], v{t+2}
    s_waitcnt lgkmcnt(0)
    ''')
    g.norm_silu_pack(); g.a_store(None, SC)
    a(f'''
    s_lshl_b32 s{sT+8}, s{sLAYER}, 1
    s_add_u32 s{sT+8}, s{sT+8}, s{sB}
    s_lshl_b32 s{sT+8}, s{sT+8}, 16
    s_add_u32 s{sT+8}, s{sT+8}, {WS_FLAG}
    s_lshl_b32 s{sT+1}, s{sPXT}, 11
    s_lshl_b32 s{sT}, s{sOC0}, 2
    s_add_u32 s{sT}, s{sT}, s{sT+1}
    s_add_u32 s{sT+7}, s{sT}, s{sT+8}
    s_lshl_b32 s{sT}, s{sG}, 14
    s_add_u32 s0, s{sT+8}, s{sT}
    v_lshlrev_b32 v{t}, 14, v{vLANE}
    v_mov_b32 v{t+1}, s{sTAG}
    v_lshrrev_b32 v{t+12}, 4, v{vLANE}
    v_cmp_eq_u32 vcc, 3, v{t+12}
    v_cndmask_b32 v{t+12}, v{t+12}, 1, vcc
    s_sub_u32 s{sT}, s{sPXT}, 1
    v_add_u32 v{t+12}, s{sT}, v{t+12}
    v_med3_i32 v{t+12}, v{t+12}, 0, 7
    v_and_b32 v{t+13}, 15, v{vLANE}
    v_lshlrev_b32 v{t+13}, 7, v{t+13}
    v_lshl_add_u32 v{t+12}, v{t+12}, 11, v{t+13}
    s_lshl_b32 s{sT+4}, s{sB}, 20
    s_lshl_b32 s{sT+5}, s{sLAYER}, 21
    s_add_u32 s{sT+4}, s{sT+4}, s{sT+5}
    ''')
    g.srd(S_A, P_WS, 1 << 20, add_sgpr=sT + 4)
    a('s_waitcnt vmcnt(0)')
    a('s_barrier')
    g.stamp_l(5)
    a(f'''
    s_cmp_lg_u32 s{sWAVE}, 0
    s_cbranch_scc1 L_fl_nostore
    s_mov_b64 exec, 15
    buffer_store_dword v{t+1}, v{t}, s[{S_WS}:{S_WS+3}], s{sT+7} offen {SC}
    s_mov_b64 exec, -1
    ''')
    a.label('L_fl_nostore')
    a(f's_cmp_lg_u32 s{sLAYER}, 0\n s_cbranch_scc1 L_skip0')
    g.emb_gather_addr(TMP + 64)
    g.emb_gather_issue(TMP + 64, SC)
    g.first_frags()
    g.poll4(lambda: None, [TMP + 65, TMP + 67, TMP + 69, TMP + 71], 'pemb', SLP, retry=lambda: g.emb_gather_issue(TMP + 64, SC))
    g.emb_gather_reduce(TMP + 64)
    a(f's_cmp_eq_u32 s{sWAVE}, 0\n s_cbranch_scc1 L_skip0')
    bulk_units(2)
    a.label('L_skip0')
    a(f's_cmp_lg_u32 s{sWAVE}, 0\n s_cbranch_scc1 L_fl_join')
    g.poll4(lambda: a(f'buffer_load_dword v{t+13}, v{t+12}, s[{S_WS}:{S_WS+3}], s0 offen {SC}'), [t + 13], 'pflag', SLP)
    a.label('L_fl_join')
    a('s_barrier')
    g.stamp_l(6)
    AF = SC if 'actplain' not in EXP else ''
    g.first_acts(AF)
    a(f's_cmp_lg_u32 s{sLAYER}, 0\n s_cbranch_scc1 L_skip1')
    warm(P_W2, 0, 9216)
    a('s_waitcnt vmcnt(9)')
    a('s_branch L_go')
    a.label('L_skip1')
    a('s_waitcnt vmcnt(0)')
    a.label('L_go')
    g.stamp_l(7)
    g.conv_loop(AF)
    g.stamp_l(8)
    g.conv_reduce(2 * SLOT, vm=0)
    g.stamp_l(9)
    a(f's_cmp_lg_u32 s{sLAYER}, 0\n s_cbranch_scc1 L_final')
    g.load_gb(P_G2, P_B2)
    for c in range(8):
        a(f'v_add_f32 v{vVAL+2*c}, s{sEMB+c}, v{vVAL+2*c}\n v_add_f32 v{vVAL+2*c+1}, s{sEMB+c}, v{vVAL+2*c+1}')
    a(f's_mov_b32 s{sLAYER}, 1')
    g.zero_acc()
    g.unpack_gb()
    a('s_branch L_layer')
    a.label('L_final')
    g.srd(S_OUT, P_OUT, 2 << 20)
    g.out_store()
    a(f'''
    s_lshr_b32 s{sT}, s2, 3
    s_or_b32 s{sT}, s{sT}, s{sG}
    s_or_b32 s{sT}, s{sT}, s{sWAVE}
    s_cmp_lg_u32 s{sT}, 0
    s_cbranch_scc1 L_noep
    s_lshl_b32 s{sT}, s{sB}, 8
    s_add_u32 s{sT}, s{sT}, {WS_EPOCH}
    v_mov_b32 v{t}, 0
    v_mov_b32 v{t+1}, s{sTAG}
    s_mov_b64 exec, 1
    buffer_store_dword v{t+1}, v{t}, s[{S_WS}:{S_WS+3}], s{sT} offen
    s_mov_b64 exec, -1
    ''')
    a.label('L_noep')
    if STAMPS: a('s_waitcnt vmcnt(0)')
    g.stamp(15); g.stamp_flush(0)
    g.end_kernel('L_exit')
    txt = hdr + a.text() + '.section .rodata,"a"\n' + kd(name, NVGPR, 64)
    return txt

if __name__ == '__main__':
    if '--stamps' in sys.argv:
        STAMPS = True; sys.argv.remove('--stamps')
    for x in list(sys.argv):
        if x.startswith('--exp='):
            EXP = set(x[6:].split(',')); sys.argv.remove(x)
    mode = sys.argv[1] if len(sys.argv) > 1 else 'baseline'
    out = sys.argv[2] if len(sys.argv) > 2 else 'standalone__adm_resblock__diffusion.s'
    txt = {'baseline': gen_baseline, 'fused': gen_fused}[mode]()
    open(out, 'w').write(txt)
    print('wrote', out, len(txt))
```

```python
import sys
from asmlib import Asm, Ins, regs_of

WS_A1   = 0
WS_A2   = 2 << 20
WS_H    = 4 << 20
WS_STAT = 8 << 20
WS_EMB  = (8 << 20) + (64 << 10)
WS_FLAG = (9 << 20)
WS_EPOCH = (8 << 20) + (576 << 10)
WS_STATB = (8 << 20) + (640 << 10)
WS_STAMP = 10 << 20
WS_SIZE = 16 << 20

SLOT = 36864
DUMMY = 4 * SLOT
LDS_BYTES = 163840

S_W, S_A, S_X, S_WS, S_OUT = 4, 8, 12, 16, 20
sWAVE, sB, sG, sOCT, sPXT, sOC0, sY0 = 3, 24, 25, 26, 27, 28, 29
sTAG, sLAYER = 30, 31
P_X, P_T, P_G1, P_B1, P_W1, P_WE, P_G2, P_B2, P_W2, P_OUT, P_DBG, P_WS = [32 + 2 * i for i in range(12)]
sSELE, sSELO = 56, 57
sQ, sSOFW, sSOFA, sWOFF, sRECB, sW0, sRECA, sAREC1, sITER = 58, 59, 60, 61, 62, 63, 64, 65, 66
sT = 67
sGAM = 76
sBET = 84
sEMB = 92
sXO = 0

vLANE = 1
vDMA = [2, 16, 17, 18, 19, 20, 21, 22, 23]
vRD = 3
vRD2 = 24
vACT, vTOP, vBOT = 11, 12, 13
vSTAMP = 14
vXA = 15
vT = 232
vF = 32
vRAW = 68
vR = [104, 152]
vS = 200
vXPK = 248
TMP = 104
vVAL = 200
TMP2 = 216
NVGPR = 256
STAMPS = False
EXP = set()
DBGWG = 77

def r4(b): return f'v[{b}:{b+3}]'

class Gen:
    def __init__(self):
        self.a = Asm()
        self.uid = 0
    def lbl(self, s):
        self.uid += 1
        return f'L_{s}_{self.uid}'
    def stamp(self, i, cyc=False):
        if not STAMPS: return
        if 'dbg' in EXP: i = {0: 16, 1: 17, 2: 0, 15: 1}[i]
        self.a(f'''
        {'s_memtime' if cyc else 's_memrealtime'} s[100:101]
        s_waitcnt lgkmcnt(0)
        v_writelane_b32 v{vSTAMP}, s100, {i}
        ''')
    def stamp_l(self, i):
        if not STAMPS: return
        self.a(f'''
        s_memrealtime s[100:101]
        s_mul_i32 m0, s{sLAYER}, {7 if 'dbg' in EXP else 16}
        s_add_u32 m0, m0, {i - 1 if 'dbg' in EXP else i}
        s_waitcnt lgkmcnt(0)
        s_nop 3
        v_writelane_b32 v{vSTAMP}, s100, m0
        ''')
    def stamp_flush(self, k):
        if not STAMPS: return
        if 'dbg' in EXP:
            L = self.lbl('dbgskip')
            self.a(f'''
            s_cmp_lg_u32 s2, {DBGWG}
            s_cbranch_scc1 {L}
            s_cmp_lg_u32 s{sWAVE}, 0
            s_cbranch_scc1 {L}
            v_readlane_b32 s100, v{vSTAMP}, 16
            s_mov_b32 s{S_WS}, s{P_X}
            s_mov_b32 s{S_WS+1}, s{P_X+1}
            s_mov_b32 s{S_WS+2}, 256
            v_lshlrev_b32 v{vT}, 2, v{vLANE}
            v_subrev_u32 v{vSTAMP}, s100, v{vSTAMP}
            buffer_store_dword v{vSTAMP}, v{vT}, s[{S_WS}:{S_WS+3}], 0 offen
            ''')
            self.a.label(L)
            return
        self.srd(S_WS, P_WS, WS_SIZE)
        self.a(f'''
        s_lshl_b32 s100, s2, 10
        s_add_u32 s100, s100, {WS_STAMP + k * (256 << 10)}
        v_lshlrev_b32 v{vT}, 2, v0
        buffer_store_dword v{vSTAMP}, v{vT}, s[{S_WS}:{S_WS+3}], s100 offen
        ''')

    def setup(self, exit_label):
        self.a(f'''
        s_cmp_ge_u32 s2, 256
        s_cbranch_scc1 {exit_label}
        s_load_dwordx16 s[32:47], s[0:1], 0
        s_load_dwordx8 s[48:55], s[0:1], 64
        v_lshrrev_b32 v{vT}, 6, v0
        v_and_b32 v{vLANE}, 63, v0
        v_readfirstlane_b32 s{sWAVE}, v{vT}
        s_and_b32 s{sT}, s2, 7
        s_lshr_b32 s{sT+1}, s2, 3
        s_lshr_b32 s{sB}, s{sT}, 2
        s_and_b32 s{sG}, s{sT}, 3
        s_and_b32 s{sOCT}, s{sT+1}, 3
        s_lshr_b32 s{sPXT}, s{sT+1}, 2
        s_lshl_b32 s{sOC0}, s{sG}, 7
        s_lshl_b32 s{sT+2}, s{sOCT}, 5
        s_add_u32 s{sOC0}, s{sOC0}, s{sT+2}
        s_lshl_b32 s{sY0}, s{sPXT}, 2
        s_mov_b32 s{sSELE}, 0x07060100
        s_mov_b32 s{sSELO}, 0x05040302
        s_mov_b32 s{sTAG}, 1
        ''')
    def srd(self, d, ptr, size, add_sgpr=None, add_imm=0):
        a = self.a
        if add_sgpr is None and add_imm == 0:
            a(f's_mov_b32 s{d}, s{ptr}\n s_mov_b32 s{d+1}, s{ptr+1}')
        else:
            if add_sgpr is not None:
                a(f's_add_u32 s{d}, s{ptr}, s{add_sgpr}\n s_addc_u32 s{d+1}, s{ptr+1}, 0')
                if add_imm:
                    a(f's_add_u32 s{d}, s{d}, {add_imm}\n s_addc_u32 s{d+1}, s{d+1}, 0')
            else:
                a(f's_add_u32 s{d}, s{ptr}, {add_imm}\n s_addc_u32 s{d+1}, s{ptr+1}, 0')
        a(f's_mov_b32 s{d+2}, {size}\n s_mov_b32 s{d+3}, 0x00020000')

    def xtile_addr(self):
        self.a(f'''
        s_lshl_b32 s{sT}, s{sB}, 20
        s_lshl_b32 s{sT+1}, s{sWAVE}, 3
        s_add_u32 s{sT+1}, s{sT+1}, s{sOC0}
        s_lshl_b32 s{sT+1}, s{sT+1}, 11
        s_add_u32 s{sT}, s{sT}, s{sT+1}
        s_lshl_b32 s{sT+1}, s{sY0}, 6
        s_add_u32 s{sT}, s{sT}, s{sT+1}
        v_lshlrev_b32 v{vXA}, 2, v{vLANE}
        v_add_u32 v{vXA}, s{sT}, v{vXA}
        ''')
    def xsoffs(self):
        self.a(f's_movk_i32 s{sT+1}, 4096\n s_movk_i32 s{sT+2}, 8192\n s_movk_i32 s{sT+3}, 12288')
        return ['0', f's{sT+1}', f's{sT+2}', f's{sT+3}']
    def xtile_load(self):
        so = self.xsoffs()
        for c in range(8):
            self.a(f'buffer_load_dword v{vXPK+c}, v{vXA}, s[{S_X}:{S_X+3}], {so[c//2]} offen offset:{(c%2)*2048}')
    def xtile_unpack(self):
        for c in range(8):
            self.a(f'v_lshlrev_b32 v{vVAL+2*c}, 16, v{vXPK+c}\n v_and_b32 v{vVAL+2*c+1}, 0xffff0000, v{vXPK+c}')

    def wave_reduce(self, regs, full=True):
        steps = ['row_shr:1 row_mask:0xf bank_mask:0xf bound_ctrl:0', 'row_shr:2 row_mask:0xf bank_mask:0xf bound_ctrl:0',
                 'row_shr:4 row_mask:0xf bank_mask:0xf bound_ctrl:0', 'row_shr:8 row_mask:0xf bank_mask:0xf bound_ctrl:0',
                 'row_bcast:15 row_mask:0xa bank_mask:0xf']
        if full: steps.append('row_bcast:31 row_mask:0xc bank_mask:0xf')
        for st in steps:
            for r in regs:
                self.a(f'v_add_f32_dpp v{r}, v{r}, v{r} {st}')

    def wave_stats(self):
        a = self.a
        t = vT
        a(f'v_readfirstlane_b32 s{sT}, v{vVAL}')
        D = TMP2
        for i in range(16):
            a(f'v_subrev_f32 v{D+i}, s{sT}, v{vVAL+i}')
        a(f'v_add_f32 v{t}, v{D}, v{D+1}\n v_mul_f32 v{t+1}, v{D}, v{D}\n v_mul_f32 v{t+3}, v{D+1}, v{D+1}\n v_add_f32 v{t+2}, v{D+2}, v{D+3}')
        for i in range(2, 16):
            a(f'v_fmac_f32 v{t+1+2*(i&1)}, v{D+i}, v{D+i}')
            if i >= 4: a(f'v_add_f32 v{t+2*(i&1)}, v{t+2*(i&1)}, v{D+i}')
        a(f'v_add_f32 v{t}, v{t}, v{t+2}\n v_add_f32 v{t+1}, v{t+1}, v{t+3}')
        self.wave_reduce([t, t+1])
        a(f'''
        v_readlane_b32 s{sT+1}, v{t}, 63
        v_readlane_b32 s{sT+2}, v{t+1}, 63
        v_mov_b32 v{t+5}, s{sTAG}
        v_mov_b32 v{t+7}, s{sTAG}
        v_mov_b32 v{t}, 0x3a800000
        v_mul_f32 v{t}, s{sT+1}, v{t}
        v_add_f32 v{t+4}, s{sT}, v{t}
        v_mul_f32 v{t+1}, s{sT+1}, v{t}
        v_sub_f32 v{t+6}, s{sT+2}, v{t+1}
        ''')
    def stat_base(self, dst, layer):
        a = self.a
        a(f's_and_b32 s{dst}, s2, 7\n s_lshl_b32 s{dst}, s{dst}, 11')
        if layer is None:
            a(f's_lshl_b32 s{sT+7}, s{sLAYER}, 14\n s_add_u32 s{dst}, s{dst}, s{sT+7}\n s_add_u32 s{dst}, s{dst}, {WS_STAT}')
        else:
            a(f's_add_u32 s{dst}, s{dst}, {WS_STAT + layer * 16384}')
    def stats_publish(self, layer, flags=''):
        a = self.a
        self.stat_base(sT + 8, layer)
        a(f'''
        s_lshr_b32 s{sT+1}, s2, 3
        s_lshl_b32 s{sT+1}, s{sT+1}, 2
        s_add_u32 s{sT+1}, s{sT+1}, s{sWAVE}
        s_lshl_b32 s{sT+1}, s{sT+1}, 4
        s_add_u32 s{sT}, s{sT+8}, s{sT+1}
        v_mov_b32 v{vT}, 0
        s_mov_b64 exec, 1
        buffer_store_dwordx4 v[{vT+4}:{vT+7}], v{vT}, s[{S_WS}:{S_WS+3}], s{sT} offen {flags}
        s_mov_b64 exec, -1
        v_lshlrev_b32 v{vT+15}, 4, v{vLANE}
        ''')
    def stats_load_issue(self, flags=''):
        self.a(f'''
        buffer_load_dwordx4 v[{vT+4}:{vT+7}], v{vT+15}, s[{S_WS}:{S_WS+3}], s{sT+8} offen {flags}
        buffer_load_dwordx4 v[{vT+8}:{vT+11}], v{vT+15}, s[{S_WS}:{S_WS+3}], s{sT+8} offen offset:1024 {flags}
        ''')
    def poll4(self, issue, regs, name, slp='', retry=None):
        a = self.a
        L = self.lbl(name); D = self.lbl(name + '_done')
        a(f's_mov_b32 s{sT+6}, 0')
        a.label(L)
        issue()
        a('s_waitcnt vmcnt(0)')
        a(f'v_cmp_ne_u32 vcc, s{sTAG}, v{regs[0]}')
        for r in regs[1:]:
            a(f'v_cmp_ne_u32_e64 s[52:53], s{sTAG}, v{r}')
            a('s_or_b64 vcc, vcc, s[52:53]')
        a(f's_cmp_eq_u64 vcc, 0\n s_cbranch_scc1 {D}')
        if slp: a(slp)
        if retry: retry()
        a(f'''
        s_add_u32 s{sT+6}, s{sT+6}, 1
        s_cmp_lt_u32 s{sT+6}, 0x40000
        s_cbranch_scc1 {L}
        ''')
        a.label(D)
    def stats_combine(self):
        a = self.a
        t = vT
        a(f'''
        v_readfirstlane_b32 s{sT}, v{t+4}
        v_add_f32 v{t+2}, v{t+6}, v{t+10}
        v_subrev_f32 v{t+4}, s{sT}, v{t+4}
        v_subrev_f32 v{t+8}, s{sT}, v{t+8}
        v_add_f32 v{t}, v{t+4}, v{t+8}
        v_mul_f32 v{t+1}, v{t+4}, v{t+4}
        v_fmac_f32 v{t+1}, v{t+8}, v{t+8}
        ''')
        self.wave_reduce([t, t+1, t+2])
        a(f'''
        v_readlane_b32 s{sT+1}, v{t}, 63
        v_readlane_b32 s{sT+2}, v{t+1}, 63
        v_readlane_b32 s{sT+3}, v{t+2}, 63
        v_mov_b32 v{t+4}, 0x3c000000
        v_mul_f32 v{t+4}, s{sT+1}, v{t+4}
        v_add_f32 v{t}, s{sT}, v{t+4}
        v_mul_f32 v{t+5}, s{sT+1}, v{t+4}
        v_sub_f32 v{t+5}, s{sT+2}, v{t+5}
        v_mov_b32 v{t+6}, s{sT+3}
        v_fmac_f32 v{t+6}, 0x44800000, v{t+5}
        v_mov_b32 v{t+7}, 0x3727c5ac
        v_fmac_f32 v{t+7}, 0x37000000, v{t+6}
        v_rsq_f32 v{t+1}, v{t+7}
        ''')
    def load_gb(self, pg, pb):
        self.a(f'''
        s_lshl_b32 s{sT}, s{sWAVE}, 3
        s_add_u32 s{sT}, s{sT}, s{sOC0}
        s_lshl_b32 s{sT}, s{sT}, 1
        s_add_u32 s{sT+1}, s{pg}, s{sT}
        s_addc_u32 s{sT+2}, s{pg+1}, 0
        s_add_u32 s{sT+3}, s{pb}, s{sT}
        s_addc_u32 s{sT+4}, s{pb+1}, 0
        s_load_dwordx4 s[{sGAM+4}:{sGAM+7}], s[{sT+1}:{sT+2}], 0
        s_load_dwordx4 s[{sBET+4}:{sBET+7}], s[{sT+3}:{sT+4}], 0
        ''')
    def unpack_gb(self):
        a = self.a
        a('s_waitcnt lgkmcnt(0)')
        for base in (sGAM, sBET):
            for i in range(2):
                a(f's_lshl_b32 s{base+2*i}, s{base+4+i}, 16\n s_and_b32 s{base+2*i+1}, s{base+4+i}, 0xffff0000')
            a(f'''
            s_mov_b32 s{sT}, s{base+6}
            s_mov_b32 s{sT+1}, s{base+7}
            s_lshl_b32 s{base+4}, s{sT}, 16
            s_and_b32 s{base+5}, s{sT}, 0xffff0000
            s_lshl_b32 s{base+6}, s{sT+1}, 16
            s_and_b32 s{base+7}, s{sT+1}, 0xffff0000
            ''')
    def norm_silu_pack(self):
        a = self.a
        SC, SH = TMP + 8, TMP + 16
        Z, E_ = TMP + 24, TMP + 40
        for c in range(8): a(f'v_mul_f32 v{SC+c}, s{sGAM+c}, v{vT+1}')
        for c in range(8): a(f'v_mov_b32 v{SH+c}, s{sBET+c}')
        for c in range(8): a(f'v_fma_f32 v{SH+c}, -v{vT}, v{SC+c}, v{SH+c}')
        for i in range(16): a(f'v_fma_f32 v{Z+i}, v{vVAL+i}, v{SC+i//2}, v{SH+i//2}')
        for i in range(16): a(f'v_mul_f32 v{E_+i}, 0xbfb8aa3b, v{Z+i}')
        for i in range(16): a(f'v_exp_f32 v{E_+i}, v{E_+i}')
        for i in range(16): a(f'v_add_f32 v{E_+i}, 1.0, v{E_+i}')
        for i in range(16): a(f'v_rcp_f32 v{E_+i}, v{E_+i}')
        for i in range(16): a(f'v_mul_f32 v{Z+i}, v{Z+i}, v{E_+i}')
        for e in range(2):
            for cp in range(4):
                a(f'v_cvt_pk_bf16_f32 v{TMP+4*e+cp}, v{Z+2*(2*cp)+e}, v{Z+2*(2*cp+1)+e}')
    def a_store(self, layer, flags=''):
        a = self.a
        a(f'''
        s_lshr_b32 s{sT}, s{sOC0}, 3
        s_add_u32 s{sT}, s{sT}, s{sWAVE}
        s_lshl_b32 s{sT}, s{sT}, 14
        s_lshl_b32 s{sT+1}, s{sB}, 20
        s_add_u32 s{sT}, s{sT}, s{sT+1}
        s_lshl_b32 s{sT+1}, s{sY0}, 9
        s_add_u32 s{sT}, s{sT}, s{sT+1}
        ''')
        if layer is None:
            a(f's_lshl_b32 s{sT+1}, s{sLAYER}, 21\n s_add_u32 s{sT}, s{sT}, s{sT+1}')
        elif layer:
            a(f's_add_u32 s{sT}, s{sT}, {layer << 21}')
        a(f'''
        v_lshrrev_b32 v{vT+2}, 4, v{vLANE}
        v_and_b32 v{vT+3}, 15, v{vLANE}
        v_lshlrev_b32 v{vT+2}, 9, v{vT+2}
        v_lshl_add_u32 v{vT+2}, v{vT+3}, 4, v{vT+2}
        buffer_store_dwordx4 v[{TMP}:{TMP+3}], v{vT+2}, s[{S_WS}:{S_WS+3}], s{sT} offen {flags}
        buffer_store_dwordx4 v[{TMP+4}:{TMP+7}], v{vT+2}, s[{S_WS}:{S_WS+3}], s{sT} offen offset:256 {flags}
        ''')

    def emb_load(self):
        a = self.a
        B = TMP + 56
        self.srd(S_A, P_T, 3072)
        self.srd(S_OUT, P_WE, 786432)
        a(f'''
        s_lshl_b32 s{sT}, s{sPXT}, 2
        s_add_u32 s{sT}, s{sT}, s{sWAVE}
        s_mul_i32 s{sT}, s{sT}, 24
        v_lshrrev_b32 v{B+12}, 4, v{vLANE}
        v_mul_u32_u24 v{B+12}, 6, v{B+12}
        v_add_u32 v{B+12}, s{sT}, v{B+12}
        s_mul_i32 s{sT+1}, s{sB}, 1536
        v_lshlrev_b32 v{B+13}, 1, v{B+12}
        buffer_load_dwordx3 v[{B+8}:{B+10}], v{B+13}, s[{S_A}:{S_A+3}], s{sT+1} offen
        v_lshlrev_b32 v{B+15}, 10, v{B+12}
        v_and_b32 v{B+14}, 15, v{vLANE}
        v_lshl_add_u32 v{B+15}, v{B+14}, 2, v{B+15}
        s_lshl_b32 s{sT+1}, s{sOC0}, 1
        s_add_u32 s{sT+2}, s{sT+1}, 3072
        ''')
        for k in range(6):
            a(f'buffer_load_dword v{B+k}, v{B+15}, s[{S_OUT}:{S_OUT+3}], s{sT+1+k//3} offen offset:{(k%3)*1024}')
    def emb_compute_publish(self, flags=''):
        a = self.a
        B = TMP + 56
        S = B + 16
        E_ = B + 24
        for k in range(6):
            src = B + 8 + k // 2
            if k % 2 == 0: a(f'v_lshlrev_b32 v{S+k}, 16, v{src}')
            else: a(f'v_and_b32 v{S+k}, 0xffff0000, v{src}')
        for k in range(6): a(f'v_mul_f32 v{E_+k}, 0xbfb8aa3b, v{S+k}')
        for k in range(6): a(f'v_exp_f32 v{E_+k}, v{E_+k}')
        for k in range(6): a(f'v_add_f32 v{E_+k}, 1.0, v{E_+k}')
        for k in range(6): a(f'v_rcp_f32 v{E_+k}, v{E_+k}')
        for k in range(6): a(f'v_mul_f32 v{S+k}, v{S+k}, v{E_+k}')
        A0, A1_ = E_ + 8, E_ + 10
        for k in range(6):
            a(f'v_lshlrev_b32 v{E_+12}, 16, v{B+k}\n v_and_b32 v{E_+13}, 0xffff0000, v{B+k}')
            if k == 0:
                a(f'v_mul_f32 v{A0}, v{E_+12}, v{S}\n v_mul_f32 v{A1_}, v{E_+13}, v{S}')
            else:
                a(f'v_fmac_f32 v{A0}, v{E_+12}, v{S+k}\n v_fmac_f32 v{A1_}, v{E_+13}, v{S+k}')
        for sw in ('v_permlane32_swap_b32', 'v_permlane16_swap_b32'):
            a(f'''
            v_mov_b32 v{E_+12}, v{A0}
            v_mov_b32 v{E_+13}, v{A1_}
            {sw} v{E_+12}, v{A0}
            {sw} v{E_+13}, v{A1_}
            v_add_f32 v{A0}, v{A0}, v{E_+12}
            v_add_f32 v{A1_}, v{A1_}, v{E_+13}
            ''')
        a(f'''
        v_mov_b32 v{A0+1}, s{sTAG}
        v_mov_b32 v{A1_+1}, s{sTAG}
        s_lshl_b32 s{sT}, s{sB}, 4
        s_lshr_b32 s{sT+1}, s{sOC0}, 5
        s_add_u32 s{sT}, s{sT}, s{sT+1}
        s_lshl_b32 s{sT}, s{sT}, 13
        s_lshl_b32 s{sT+1}, s{sPXT}, 2
        s_add_u32 s{sT+1}, s{sT+1}, s{sWAVE}
        s_lshl_b32 s{sT+1}, s{sT+1}, 4
        s_add_u32 s{sT}, s{sT}, s{sT+1}
        s_add_u32 s{sT}, s{sT}, {WS_EMB}
        v_lshlrev_b32 v{E_+12}, 9, v{vLANE}
        s_mov_b64 exec, 0xffff
        buffer_store_dwordx4 v[{A0}:{A0+3}], v{E_+12}, s[{S_WS}:{S_WS+3}], s{sT} offen {flags}
        s_mov_b64 exec, -1
        ''')
    def emb_gather_addr(self, base):
        self.a(f'''
        s_lshl_b32 s{sT+8}, s{sB}, 4
        s_lshr_b32 s{sT+1}, s{sOC0}, 5
        s_add_u32 s{sT+8}, s{sT+8}, s{sT+1}
        s_lshl_b32 s{sT+8}, s{sT+8}, 13
        s_lshl_b32 s{sT+1}, s{sWAVE}, 11
        s_add_u32 s{sT+8}, s{sT+8}, s{sT+1}
        s_add_u32 s{sT+8}, s{sT+8}, {WS_EMB}
        v_lshlrev_b32 v{base+8}, 4, v{vLANE}
        ''')
    def emb_gather_issue(self, base, flags=''):
        self.a(f'''
        buffer_load_dwordx4 v[{base}:{base+3}], v{base+8}, s[{S_WS}:{S_WS+3}], s{sT+8} offen {flags}
        buffer_load_dwordx4 v[{base+4}:{base+7}], v{base+8}, s[{S_WS}:{S_WS+3}], s{sT+8} offen offset:1024 {flags}
        ''')
    def emb_gather_reduce(self, base):
        self.wave_reduce([base, base+2, base+4, base+6], full=False)
        for q in range(2):
            for ps in range(2):
                for e in range(2):
                    self.a(f'v_readlane_b32 s{sEMB + 4*q + 2*ps + e}, v{base + 4*q + 2*e}, {31 + 32*ps}')

    def conv_addr_dma(self):
        t = vT
        self.a(f'''
        s_and_b32 s{sT}, s{sWAVE}, 1
        s_lshl_b32 s{sT}, s{sT}, 3
        v_lshrrev_b32 v{t}, 3, v{vLANE}
        v_add_u32 v{t}, s{sT}, v{t}
        v_lshrrev_b32 v{t+1}, 1, v{t}
        v_lshrrev_b32 v{t+2}, 3, v{t}
        v_xor_b32 v{t+2}, v{t+2}, v{t}
        v_and_b32 v{t+2}, 1, v{t+2}
        v_lshl_add_u32 v{t+2}, v{t+2}, 3, v{t+1}
        v_and_b32 v{t+3}, 7, v{vLANE}
        v_xor_b32 v{t+3}, v{t+3}, v{t+1}
        v_mul_u32_u24 v{vDMA[0]}, 9216, v{t+2}
        v_lshl_add_u32 v{vDMA[0]}, v{t+3}, 4, v{vDMA[0]}
        s_lshr_b32 s{sT+1}, s{sWAVE}, 1
        s_mul_i32 s{sT+2}, s{sT+1}, 1152
        s_add_u32 s{sT+2}, s{sT+2}, 4096
        v_add_u32 v{vDMA[0]}, s{sT+2}, v{vDMA[0]}
        s_mul_i32 s{sW0}, s{sOC0}, 9216
        s_add_u32 s{sW0}, s{sW0}, 4096
        s_mul_i32 s{sWOFF}, s{sWAVE}, 9216
        s_mov_b32 s{S_W+3}, 0x00020000
        ''')
        for k in range(1, 9):
            self.a(f'v_add_u32 v{vDMA[k]}, {128*k - 1024*(k%4)}, v{vDMA[0]}')
    def w_srd(self, ptr):
        return [f's_sub_u32 s{S_W}, s{ptr}, 8192', f's_subb_u32 s{S_W+1}, s{ptr+1}, 0']
    WREC = 4718592 + 8192
    def dma_op(self, k, slot):
        ops = []
        if k % 4 == 0: ops.append(f's_add_u32 m0, s{sWOFF}, {slot*SLOT + 1024*k}')
        ops.append(f'buffer_load_dwordx4 v{vDMA[k]}, s[{S_W}:{S_W+3}], s{sSOFW} offen offset:{1024*(k%4)} lds')
        return ops
    UOFF = [0, 147456, 2304, 149760]
    def dma_unit(self, slot, soff_base, uoff):
        self.a(f's_add_u32 s{sSOFW}, s{soff_base}, {uoff}')
        for k in range(9):
            for o in self.dma_op(k, slot): self.a(o)
    def conv_addr_rd(self):
        a = self.a
        t = vT
        a(f'''
        v_and_b32 v{t}, 15, v{vLANE}
        v_lshrrev_b32 v{t+1}, 2, v{t}
        v_lshrrev_b32 v{t+2}, 3, v{t}
        v_xor_b32 v{t+1}, v{t+1}, v{t+2}
        v_and_b32 v{t+1}, 1, v{t+1}
        v_and_b32 v{t+2}, 7, v{t}
        v_lshl_add_u32 v{t+1}, v{t+2}, 1, v{t+1}
        v_lshrrev_b32 v{t+7}, 3, v{t+1}
        v_mul_u32_u24 v{t+7}, 9216, v{t+7}
        v_and_b32 v{t+1}, 7, v{t+1}
        v_lshl_add_u32 v{t+1}, v{t+1}, 7, v{t+7}
        s_lshr_b32 s{sT+1}, s{sWAVE}, 1
        s_mul_i32 s{sT+2}, s{sT+1}, {18432 - 9216}
        v_add_u32 v{t+1}, s{sT+2}, v{t+1}
        v_lshrrev_b32 v{t+3}, 4, v{vLANE}
        v_mul_u32_u24 v{t+4}, 9, v{t+3}
        s_mul_i32 s{sT}, s{sWAVE}, 36
        v_add_u32 v{t+4}, s{sT}, v{t+4}
        ''')
        for j in range(8):
            a(f'''
            v_add_u32 v{t+5}, {j}, v{t+4}
            v_lshrrev_b32 v{t+6}, 3, v{t+5}
            v_and_b32 v{t+5}, 7, v{t+5}
            v_xor_b32 v{t+5}, v{t+5}, v{t+2}
            v_lshl_add_u32 v{t+6}, v{t+6}, 10, v{t+1}
            v_lshl_add_u32 v{vRD+j}, v{t+5}, 4, v{t+6}
            v_add_u32 v{vRD2+j}, {2*SLOT}, v{vRD+j}
            ''')
    def conv_addr_act(self):
        t = vT
        self.a(f'''
        v_and_b32 v{t}, 15, v{vLANE}
        v_lshrrev_b32 v{t+3}, 4, v{vLANE}
        v_lshlrev_b32 v{vACT}, 4, v{t}
        v_lshl_add_u32 v{vACT}, v{t+3}, 14, v{vACT}
        s_lshl_b32 s{sT}, s{sWAVE}, 16
        s_lshl_b32 s{sT+1}, s{sY0}, 9
        s_add_u32 s{sT}, s{sT}, s{sT+1}
        v_add_u32 v{vACT}, s{sT}, v{vACT}
        s_cmp_eq_u32 s{sPXT}, 0
        s_cselect_b32 s{sT}, 0x40000000, -512
        v_add_u32 v{vTOP}, s{sT}, v{vACT}
        s_cmp_eq_u32 s{sPXT}, 7
        s_cselect_b32 s{sT}, 0x40000000, 2048
        v_add_u32 v{vBOT}, s{sT}, v{vACT}
        ''')
    def act_op(self, R, j, e, flags=''):
        if j == 0: ad, off = vTOP, 0
        elif j == 5: ad, off = vBOT, 0
        else: ad, off = vACT, (j - 1) * 512
        return f'buffer_load_dwordx4 {r4(R+8*j+4*e)}, v{ad}, s[{S_A}:{S_A+3}], s{sSOFA} offen offset:{off + 256*e} {flags}'
    def raw_reads(self, slot):
        base = vRD if slot < 2 else vRD2
        off = (slot % 2) * SLOT
        return [f'ds_read_b128 {r4(vRAW+4*j)}, v{base + (j % 8)} offset:{off + (1024 if j == 8 else 0)}' for j in range(9)]
    def perms(self, kx):
        ops = []
        for ky in range(3):
            t = 3 * ky + kx
            for m in range(4):
                aidx = (18 * m + t) // 2; bidx = (18 * m + 9 + t) // 2
                sel = sSELE if t % 2 == 0 else sSELO
                ops.append(f'v_perm_b32 v{vF+4*t+m}, v{vRAW+bidx}, v{vRAW+aidx}, s{sel}')
        return ops
    def shifts(self, R, plus):
        ops = []
        for j in range(6):
            for i in range(4):
                if plus: ops.append(f'v_mov_b32_dpp v{vS+24+4*j+i}, v{R+8*j+i} row_shl:1 row_mask:0xf bank_mask:0xf bound_ctrl:0')
                else: ops.append(f'v_mov_b32_dpp v{vS+4*j+i}, v{R+8*j+4+i} row_shr:1 row_mask:0xf bank_mask:0xf bound_ctrl:0')
        return ops
    def mfmas(self, ob, R):
        ops = []
        for kx in (1, 0, 2):
            for ky in range(3):
                eorder = (0, 1) if kx == 1 else ((1, 0) if kx == 0 else (0, 1))
                for e in eorder:
                    for i in range(4):
                        j = i + ky
                        if kx == 1: X = R + 8*j + 4*e
                        elif kx == 0: X = (R + 8*j) if e == 1 else (vS + 4*j)
                        else: X = (R + 8*j + 4) if e == 0 else (vS + 24 + 4*j)
                        acc = 32*ob + 8*i + 4*e
                        ops.append(f'v_mfma_f32_16x16x32_bf16 a[{acc}:{acc+3}], {r4(vF+4*(3*ky+kx))}, {r4(X)}, a[{acc}:{acc+3}]')
        return ops

    def body_stream(self, aflags=''):
        NG = 288
        chains = []
        def chain(items): chains.append(list(items))
        def lin(ops, g0, g1, cost=1, slack=6):
            n = len(ops)
            return [([o] if isinstance(o, str) else o, g0 + (k * (g1 - g0)) // n, min(g0 + (k * (g1 - g0)) // n + slack, g1), cost) for k, o in enumerate(ops)]
        for st in range(4):
            g = 72 * st
            rs = (st + 1) % 4
            c = lin(self.perms(2), g, g + 7, slack=2)
            c += [(['@BAR'], g + 7, g + 8, 1)]
            c += lin(self.raw_reads(rs), g + 8, g + 17, slack=3)
            c += [(['s_waitcnt lgkmcnt(0)'], g + 26, g + 28, 1)]
            c += lin(self.perms(1), g + 26, g + 47, slack=6)
            c += lin(self.perms(0), g + 48, g + 71, slack=6)
            chain(c)
        for P in range(2):
            g = 144 * P
            R, RN = vR[P], vR[1 - P]
            chain(lin(self.shifts(R, False), g + 2, g + 27, slack=4) + lin(self.shifts(R, True), g + 27, g + 51, slack=4))
        vm = []
        acts = [(j, e) for j in range(6) for e in range(2)]
        pat = ['ADADADADADADADA', 'ADADAADDDDDDDDD']
        dk = 0
        for P in range(2):
            RN = vR[1 - P]
            ai = 0
            for ob in range(2):
                g = 144 * P + 72 * ob
                for idx, ch in enumerate(pat[ob]):
                    gpos = g + 9 + (idx * 62) // 15
                    if ch == 'A':
                        pre = []
                        if ai == 0:
                            pre = [f's_mov_b32 s{S_A+2}, {1<<20}'] if P == 0 else [f's_mov_b32 s{S_A+2}, s{sAREC1}']
                            vm.append((pre, gpos - 2, gpos, 1))
                        j, e = acts[ai]
                        vm.append(([self.act_op(RN, j, e, aflags)], gpos, gpos + 3, 3)); ai += 1
                        if ai == 12: vm.append(([f's_add_u32 s{sSOFA}, s{sSOFA}, 262144'], gpos, gpos + 4, 1))
                    else:
                        u, k = divmod(dk, 9)
                        if k == 0:
                            if u == 0: vm.append(([f's_mov_b32 s{S_W+2}, s{sRECA}'], gpos - 3, gpos, 1))
                            if u == 2: vm.append(([f's_mov_b32 s{S_W+2}, s{sRECB}'], gpos - 3, gpos, 1))
                            if u > 0: vm.append(([f's_add_u32 s{sSOFW}, s{sSOFW}, {self.UOFF[u] - self.UOFF[u-1]}'], gpos - 3, gpos, 1))
                        for o in self.dma_op(k, u):
                            if o.startswith('s_'): vm.append(([o], gpos - 2, gpos, 1))
                            else: vm.append(([o], gpos, gpos + 3, 3))
                        dk += 1
        assert dk == 36
        chain(vm)
        heads = [0] * len(chains)
        gaps = [[] for _ in range(NG)]
        debt = 0
        CAP = 2
        for gi in range(NG):
            cap = CAP - debt; debt = 0
            while True:
                cand = [(chains[c][heads[c]][2], c) for c in range(len(chains)) if heads[c] < len(chains[c]) and chains[c][heads[c]][1] <= gi]
                if not cand: break
                cand.sort()
                dl, c = cand[0]
                ops, e_, l_, cost = chains[c][heads[c]]
                if cap <= 0 and dl > gi: break
                gaps[gi] += ops; heads[c] += 1; cap -= cost
            if cap < 0: debt = min(-cap, 2)
        for c in range(len(chains)): assert heads[c] == len(chains[c]), 'unscheduled'
        mf = []
        for st in range(4): mf += self.mfmas(st & 1, vR[st >> 1])
        out = []
        for i, m in enumerate(mf):
            out.append(m); out += gaps[i]
        self.gap_hist = [len(x) for x in gaps]
        if 'novm' in EXP: out = [o for o in out if not o.startswith('buffer_load')]
        return out

    def loop_consts(self):
        return [
            f's_cmp_eq_u32 s{sQ}, 0',
            f's_cselect_b32 s{sT}, s{P_W1}, s{P_W2}',
            f's_cselect_b32 s{sT+1}, s{P_W1+1}, s{P_W2+1}',
            f's_sub_u32 s{S_W}, s{sT}, 8192',
            f's_subb_u32 s{S_W+1}, s{sT+1}, 0',
            f's_cmp_lt_u32 s{sQ}, 3',
            f's_cselect_b32 s{sRECA}, {self.WREC}, 0',
            f's_bitcmp0_b32 s{sQ}, 0',
            f's_cselect_b32 s{sRECB}, {self.WREC}, 0',
            f's_cselect_b32 s{sAREC1}, {1<<20}, 0',
            f's_cselect_b32 s{sT}, 4608, 0',
            f's_add_u32 s{sSOFW}, s{sW0}, s{sT}',
        ]

    def verify_body(self, body):
        import re
        if EXP & {'novm'}: return
        val = {}
        nm = 0; nraw = 0; nact = 0
        for rep in range(3):
            for o in body:
                if o == '@BAR': continue
                ins = Ins(o)
                if ins.mn.startswith('ds_read'):
                    unit = nraw // 9 + 1; j = nraw % 9; nraw += 1
                    for i, r in enumerate(sorted(ins.wr)): val[r] = ('raw', unit, 4*j + i)
                elif ins.mn == 'v_perm_b32':
                    d = int(ins.ops[0][1:]); b_ = val.get(('v', int(ins.ops[1][1:]))); a_ = val.get(('v', int(ins.ops[2][1:])))
                    t, m = divmod(d - vF, 4)
                    if a_ and b_:
                        assert a_[1] == b_[1] and a_[2] == (18*m+t)//2 and b_[2] == (18*m+9+t)//2
                        val[('v', d)] = ('F', a_[1], t)
                    else: val[('v', d)] = None
                elif ins.kind == 'vmem' and not ins.lds_dma:
                    ss = nact // 12 + 1; j, e = divmod(nact % 12, 2); nact += 1
                    for r in ins.wr: val[r] = ('R', ss, j, e)
                elif ins.mn.startswith('v_mov_b32_dpp'):
                    d = int(ins.ops[0][1:]); src = val.get(('v', int(ins.ops[1].split()[0][1:])))
                    val[('v', d)] = ('S',) + src[1:] if src else None
                elif ins.kind == 'mfma':
                    step = nm // 72; k = nm % 72; nm += 1
                    kx = (1, 0, 2)[k // 24]; ky = (k % 24) // 8
                    fa = {val.get(r) for r in regs_of(ins.ops[1])}; xb = {val.get(r) for r in regs_of(ins.ops[2])}
                    if rep >= 1:
                        assert fa == {('F', step, 3*ky+kx)}, (o, fa, step)
                        assert len(xb) == 1 and list(xb)[0][1] == step // 2, (o, xb, step)
    def conv_loop(self, aflags=''):
        a = self.a
        body = self.body_stream(aflags)
        waits = {}
        issued = []
        grp = -1
        step = 0
        for rep in range(3):
            w_rep = {}
            for pos, o in enumerate(body):
                need_idx = -1
                if o == '@BAR':
                    want = step + 1 - 4
                    for k, (tag, regs) in enumerate(issued):
                        if tag == ('dma', want): need_idx = k
                    step += 1
                else:
                    ins = Ins(o)
                    touched = ins.rd | ins.wr
                    if ins.kind != 'vmem':
                        for k, (tag, regs) in enumerate(issued):
                            if regs & touched: need_idx = k
                if need_idx >= 0:
                    w_rep[pos] = len(issued) - 1 - need_idx
                    issued = issued[need_idx + 1:]
                if o != '@BAR':
                    ins = Ins(o)
                    if ins.kind == 'vmem':
                        if ins.lds_dma:
                            if f'v{vDMA[0]},' in o: grp += 1
                            issued.append((('dma', grp), set()))
                        else:
                            issued.append((('ld', 0), set(ins.wr)))
            waits[rep] = w_rep
        assert waits[1] == waits[2], 'not periodic'
        W = waits[2]
        self.verify_body(body)
        L = self.lbl('conv')
        a.label(L)
        for o in self.loop_consts(): a(o)
        for pos, o in enumerate(body):
            if pos in W and 'nowait' not in EXP:
                assert W[pos] < 64
                a(f's_waitcnt vmcnt({W[pos]})')
            a('s_barrier' if o == '@BAR' else o)
        a(f's_add_u32 s{sQ}, s{sQ}, 1')
        a(f's_bitcmp1_b32 s{sQ}, 0')
        a(f's_cbranch_scc1 {L}')
        a.check_backedge(L)

    def first_frags(self):
        a = self.a
        for o in self.raw_reads(0): a(o)
        a('s_waitcnt lgkmcnt(0)')
        for o in self.perms(1) + self.perms(0): a(o)
    def zero_acc(self):
        for i in range(64): self.a(f'v_accvgpr_write_b32 a{i}, 0')
    def first_acts(self, aflags=''):
        a = self.a
        a(f's_mov_b32 s{sSOFA}, 0\n s_mov_b32 s{S_A+2}, {1<<20}')
        for j in range(6):
            for e in range(2):
                a(self.act_op(vR[0], j, e, aflags))
        a(f's_mov_b32 s{sSOFA}, 262144')

    def reduce_addr(self, scratch):
        a = self.a
        t = vT
        REC, SRC = 2112, 16896
        a(f'''
        v_and_b32 v{t}, 15, v{vLANE}
        v_lshrrev_b32 v{t+1}, 4, v{vLANE}
        v_and_b32 v{t+2}, 7, v{t}
        v_xor_b32 v{t+3}, v{t+2}, v{t+1}
        s_mul_i32 s{sT}, s{sWAVE}, {SRC}
        s_add_u32 s{sT}, s{sT}, {scratch}
        v_lshlrev_b32 v{t+6}, 7, v{t}
        v_add_u32 v{t+7}, s{sT}, v{t+6}
        v_lshl_add_u32 v{t+4}, v{t+3}, 4, v{t+7}
        v_xor_b32 v{t+3}, 4, v{t+3}
        v_lshl_add_u32 v{t+5}, v{t+3}, 4, v{t+7}
        v_mul_u32_u24 v{t+1}, {2*REC}, v{t+1}
        v_add_u32 v{t+1}, v{t+1}, v{t+6}
        v_add_u32 v{t+1}, {scratch}, v{t+1}
        s_lshl_b32 s{sT}, s{sWAVE}, 1
        v_xor_b32 v{t+2}, s{sT}, v{t+2}
        v_lshl_add_u32 v{t+8}, v{t+2}, 4, v{t+1}
        v_xor_b32 v{t+2}, 1, v{t+2}
        v_lshl_add_u32 v{t+9}, v{t+2}, 4, v{t+1}
        ''')
    def conv_reduce(self, scratch, vm=0):
        a = self.a
        t = vT
        REC, SRC = 2112, 16896
        self.reduce_addr(scratch)
        a(f's_waitcnt vmcnt({vm}) lgkmcnt(0)')
        a('s_barrier')
        for ob in range(2):
            for i in range(4):
                for e in range(2):
                    acc = 32*ob + 8*i + 4*e
                    a(f'ds_write_b128 v{t+4+ob}, a[{acc}:{acc+3}] offset:{(2*i+e)*REC}')
        a('s_waitcnt lgkmcnt(0)')
        a('s_barrier')
        RB = TMP
        for src in range(4):
            for e in range(2):
                for hh in range(2):
                    a(f'ds_read_b128 {r4(RB + 16*src + 4*(2*e+hh))}, v{t+8+hh} offset:{src*SRC + e*REC}')
        for src in range(1, 4):
            a(f's_waitcnt lgkmcnt({12 - 4*src})')
            for e in range(2):
                for hh in range(2):
                    for tt in range(4):
                        c = 4 * hh + tt
                        acc = RB + 4*(2*e+hh) + tt
                        dst = vVAL + 2*c + e if src == 3 else acc
                        a(f'v_add_f32 v{dst}, v{acc}, v{RB + 16*src + 4*(2*e+hh) + tt}')
    def out_store(self):
        a = self.a
        so = self.xsoffs()
        for c in range(8):
            a(f'''
            v_lshlrev_b32 v{TMP+2*c}, 16, v{vXPK+c}
            v_and_b32 v{TMP+2*c+1}, 0xffff0000, v{vXPK+c}
            v_add_f32 v{TMP+2*c}, v{TMP+2*c}, v{vVAL+2*c}
            v_add_f32 v{TMP+2*c+1}, v{TMP+2*c+1}, v{vVAL+2*c+1}
            v_cvt_pk_bf16_f32 v{TMP+16+c}, v{TMP+2*c}, v{TMP+2*c+1}
            buffer_store_dword v{TMP+16+c}, v{vXA}, s[{S_OUT}:{S_OUT+3}], {so[c//2]} offen offset:{(c%2)*2048}
            ''')
    def begin_kernel(self, name):
        self.a.raw(f'.globl {name}\n.p2align 8\n.type {name},@function\n{name}:')
    def end_kernel(self, exit_label):
        self.a.label(exit_label)
        self.a('s_endpgm')

def kd(name, vgpr, agpr, sgpr=102):
    acc = (vgpr + 3) // 4 * 4
    return f""".p2align 6
.amdhsa_kernel {name}
  .amdhsa_next_free_vgpr {acc + agpr}
  .amdhsa_next_free_sgpr {sgpr}
  .amdhsa_accum_offset {acc}
  .amdhsa_group_segment_fixed_size 0
  .amdhsa_kernarg_size 96
  .amdhsa_user_sgpr_count 2
  .amdhsa_user_sgpr_kernarg_segment_ptr 1
  .amdhsa_system_sgpr_workgroup_id_x 1
.end_amdhsa_kernel
"""

def h_addr(g):
    g.a(f'''
    s_lshl_b32 s{sT+5}, s2, 14
    s_add_u32 s{sT+5}, s{sT+5}, {WS_H}
    v_lshlrev_b32 v{vT+14}, 6, v0
    ''')

def conv_standalone(g, layer):
    a = g.a
    g.conv_addr_dma()
    for o in g.w_srd(P_W1 if layer == 0 else P_W2): a(o)
    a(f's_mov_b32 s{S_W+2}, {g.WREC}')
    for u in range(4): g.dma_unit(u, sW0, g.UOFF[u])
    if layer == 0:
        a(f's_mov_b32 s{P_W2}, s{P_W1}\n s_mov_b32 s{P_W2+1}, s{P_W1+1}')
    a(f's_mov_b32 s{sQ}, 2')
    a(f's_lshl_b32 s{sT+4}, s{sB}, 20')
    g.srd(S_A, P_WS, 1 << 20, add_sgpr=sT + 4, add_imm=layer << 21)
    g.conv_addr_act(); g.first_acts()
    g.conv_addr_rd(); g.zero_acc()
    a('s_waitcnt vmcnt(0)'); a('s_barrier')
    g.first_frags()
    g.stamp(2); g.stamp(8, True)
    g.conv_loop()
    g.stamp(3); g.stamp(9, True)

def gen_baseline():
    g = Gen(); a = g.a
    names = ['ka_kernel', 'kb_kernel', 'kc_kernel', 'kd_kernel', 'ke_kernel']
    lds = [0, 0, LDS_BYTES, 0, LDS_BYTES]
    hdr = ''.join(f'; @launch kernel={n} grid=(256,1,1) block=(256,1,1) lds={l}\n' for n, l in zip(names, lds))
    hdr += '.amdgcn_target "amdgcn-amd-amdhsa--gfx950"\n.text\n'
    def begin(ch):
        g.begin_kernel(f'k{ch}_kernel'); g.stamp(0); g.setup(f'L_exit_{ch}'); a('s_waitcnt lgkmcnt(0)'); g.stamp(1)
    def end(ch, k):
        if STAMPS: a('s_waitcnt vmcnt(0)')
        g.stamp(7); g.stamp_flush(k); g.end_kernel(f'L_exit_{ch}')
    begin('a')
    g.srd(S_X, P_X, 2 << 20); g.srd(S_WS, P_WS, WS_SIZE)
    g.xtile_addr(); g.xtile_load()
    g.emb_load()
    a('s_waitcnt vmcnt(7)')
    g.xtile_unpack(); g.wave_stats(); g.stats_publish(0)
    a('s_waitcnt vmcnt(1)')
    g.emb_compute_publish()
    end('a', 0)
    begin('b')
    g.srd(S_X, P_X, 2 << 20); g.srd(S_WS, P_WS, WS_SIZE)
    g.xtile_addr(); g.xtile_load()
    g.stat_base(sT + 8, 0); a(f'v_lshlrev_b32 v{vT+15}, 4, v{vLANE}'); g.stats_load_issue()
    g.load_gb(P_G1, P_B1); g.unpack_gb()
    a('s_waitcnt vmcnt(0)')
    g.xtile_unpack(); g.stats_combine(); g.norm_silu_pack(); g.a_store(0)
    end('b', 1)
    begin('c')
    g.srd(S_WS, P_WS, WS_SIZE)
    conv_standalone(g, 0)
    a('s_waitcnt vmcnt(0)')
    g.emb_gather_addr(TMP + 64); g.emb_gather_issue(TMP + 64)
    g.conv_reduce(2 * SLOT, vm=2); g.stamp(4)
    a('s_waitcnt vmcnt(0)')
    g.emb_gather_reduce(TMP + 64)
    for c in range(8):
        a(f'v_add_f32 v{vVAL+2*c}, s{sEMB+c}, v{vVAL+2*c}\n v_add_f32 v{vVAL+2*c+1}, s{sEMB+c}, v{vVAL+2*c+1}')
    g.wave_stats(); g.stats_publish(1)
    h_addr(g)
    for i in range(4):
        a(f'buffer_store_dwordx4 {r4(vVAL+4*i)}, v{vT+14}, s[{S_WS}:{S_WS+3}], s{sT+5} offen offset:{16*i}')
    end('c', 2)
    begin('d')
    g.srd(S_WS, P_WS, WS_SIZE)
    h_addr(g)
    for i in range(4):
        a(f'buffer_load_dwordx4 {r4(vVAL+4*i)}, v{vT+14}, s[{S_WS}:{S_WS+3}], s{sT+5} offen offset:{16*i}')
    g.stat_base(sT + 8, 1); a(f'v_lshlrev_b32 v{vT+15}, 4, v{vLANE}'); g.stats_load_issue()
    g.load_gb(P_G2, P_B2); g.unpack_gb()
    a('s_waitcnt vmcnt(0)')
    g.stats_combine(); g.norm_silu_pack(); g.a_store(1)
    end('d', 3)
    begin('e')
    g.srd(S_X, P_X, 2 << 20); g.srd(S_OUT, P_OUT, 2 << 20)
    conv_standalone(g, 1)
    g.xtile_addr(); g.xtile_load()
    g.conv_reduce(2 * SLOT, vm=8); g.stamp(4)
    a('s_waitcnt vmcnt(0)')
    g.out_store()
    end('e', 4)
    txt = hdr + a.text() + '.section .rodata,"a"\n'
    for n in names:
        txt += kd(n, NVGPR, 64)
    return txt

COMM = DUMMY + 8192

def gen_fused():
    g = Gen(); a = g.a
    name = 'standalone__adm_resblock__diffusion_kernel'
    hdr = f'; @launch grid=(256,1,1) block=(256,1,1) lds={LDS_BYTES}\n'
    hdr += '.amdgcn_target "amdgcn-amd-amdhsa--gfx950"\n.text\n'
    SC = 'sc1'
    t = vT
    SLP = 's_sleep 1' if 'nosleep' not in EXP else ''
    g.begin_kernel(name); g.stamp(0); g.setup('L_exit')
    g.xtile_addr()
    g.conv_addr_dma()
    a('s_waitcnt lgkmcnt(0)')
    g.stamp(1)
    if 'dbg' in EXP:
        a(f's_mov_b32 s{P_T}, s{P_T}')
    g.srd(S_X, P_X, 2 << 20)
    g.xtile_load()
    a(f'''
    s_lshl_b32 s{sT}, s{sB}, 8
    s_add_u32 s{sT}, s{sT}, {WS_EPOCH}
    s_add_u32 s{sT+1}, s{P_WS}, s{sT}
    s_addc_u32 s{sT+2}, s{P_WS+1}, 0
    s_load_dword s{sTAG}, s[{sT+1}:{sT+2}], 0
    ''')
    g.srd(S_WS, P_WS, WS_SIZE)
    if 'dbg' in EXP:
        a(f's_mov_b32 s{P_X}, s{P_DBG}\n s_mov_b32 s{P_X+1}, s{P_DBG+1}')
    ntlb = 0
    if 'tlb' in EXP:
        a(f'''
        v_lshlrev_b32 v{t}, 20, v{vLANE}
        s_mov_b64 exec, 0x3ff
        buffer_load_dword v{TMP+50}, v{t}, s[{S_WS}:{S_WS+3}], 0 offen
        s_mov_b64 exec, -1
        ''')
        ntlb = 1
    g.emb_load()
    def warm(ptr, k0, k1):
        for o in g.w_srd(ptr): a(o)
        a(f'''
        s_mov_b32 s{S_W+2}, {g.WREC}
        s_lshl_b32 s{sT}, s{sPXT}, 2
        s_add_u32 s{sT}, s{sT}, s{sWAVE}
        s_add_u32 s{sT}, s{sT}, s{sOC0}
        s_mul_i32 s{sT}, s{sT}, 9216
        s_add_u32 s{sT}, s{sT}, {8192 + k0}
        v_lshlrev_b32 v{t+14}, 4, v{vLANE}
        s_mov_b32 m0, {DUMMY}
        ''')
        n = (k1 - k0 + 1023) // 1024
        for k in range(n):
            if k and k % 4 == 0: a(f's_add_u32 s{sT}, s{sT}, 4096')
            a(f'buffer_load_dwordx4 v{t+14}, s[{S_W}:{S_W+3}], s{sT} offen offset:{1024*(k%4)} lds')
        return n
    nw = warm(P_W1, 0, 9216)
    g.load_gb(P_G1, P_B1)
    g.conv_addr_rd(); g.conv_addr_act(); g.zero_acc()
    a(f's_mov_b32 s{sLAYER}, 0\n s_mov_b32 s{sQ}, 0')
    g.unpack_gb()
    a(f's_add_u32 s{sTAG}, s{sTAG}, 1')
    a(f's_waitcnt vmcnt({ntlb + 7 + nw})')
    g.stamp(2)
    g.xtile_unpack()

    def bulk_units(u0):
        Ls = g.lbl('bulk')
        a(f's_mov_b32 s{S_W+2}, {g.WREC}')
        for u in (u0, u0 + 1): g.dma_unit(u, sW0, g.UOFF[u])
        a(f's_cmp_lg_u32 s{sWAVE}, 2\n s_cbranch_scc1 {Ls}')
        a(f's_sub_u32 s{sT+5}, s{sW0}, 1152\n s_sub_u32 s{sWOFF}, s{sWOFF}, 18432')
        for u in (u0, u0 + 1): g.dma_unit(u, sT + 5, g.UOFF[u])
        a(f's_add_u32 s{sWOFF}, s{sWOFF}, 18432')
        a.label(Ls)

    a.label('L_layer')
    g.wave_stats()
    a(f'''
    v_mov_b32 v{t+5}, v{t+6}
    s_lshl_b32 s{sT}, s{sWAVE}, 3
    s_add_u32 s{sT}, s{sT}, {COMM}
    v_mov_b32 v{t}, s{sT}
    ds_write_b64 v{t}, v[{t+4}:{t+5}]
    v_and_b32 v{t+1}, 3, v{vLANE}
    v_lshlrev_b32 v{t+1}, 3, v{t+1}
    v_add_u32 v{t+1}, {COMM}, v{t+1}
    v_and_b32 v{t+15}, 31, v{vLANE}
    v_lshlrev_b32 v{t+14}, 7, v{t+15}
    v_lshlrev_b32 v{t+15}, 4, v{t+15}
    s_waitcnt lgkmcnt(0)
    s_barrier
    s_cmp_lg_u32 s{sWAVE}, 0
    s_cbranch_scc1 L_st_nopub
    ds_read_b64 v[{t+4}:{t+5}], v{t+1}
    ''')
    g.stat_base(sT + 8, None)
    a(f'''
    s_lshr_b32 s{sT+1}, s2, 3
    s_lshl_b32 s{sT+1}, s{sT+1}, 4
    s_add_u32 s{sT+2}, s{sT+8}, s{sT+1}
    s_sub_u32 s1, s{sT+8}, {WS_STAT}
    s_lshl_b32 s1, s1, 1
    s_add_u32 s1, s1, {WS_STATB}
    s_lshl_b32 s{sT+1}, s{sT+1}, 3
    s_add_u32 s{sT+3}, s1, s{sT+1}
    s_waitcnt lgkmcnt(0)
    v_readfirstlane_b32 s{sT}, v{t+4}
    v_subrev_f32 v{t}, s{sT}, v{t+4}
    v_mul_f32 v{t+1}, v{t}, v{t}
    v_add_f32_dpp v{t}, v{t}, v{t} quad_perm:[1,0,3,2] row_mask:0xf bank_mask:0xf
    v_add_f32_dpp v{t+5}, v{t+5}, v{t+5} quad_perm:[1,0,3,2] row_mask:0xf bank_mask:0xf
    v_add_f32_dpp v{t+1}, v{t+1}, v{t+1} quad_perm:[1,0,3,2] row_mask:0xf bank_mask:0xf
    v_add_f32_dpp v{t}, v{t}, v{t} quad_perm:[2,3,0,1] row_mask:0xf bank_mask:0xf
    v_add_f32_dpp v{t+5}, v{t+5}, v{t+5} quad_perm:[2,3,0,1] row_mask:0xf bank_mask:0xf
    v_add_f32_dpp v{t+1}, v{t+1}, v{t+1} quad_perm:[2,3,0,1] row_mask:0xf bank_mask:0xf
    v_mul_f32 v{t+2}, 0x3e800000, v{t}
    v_add_f32 v{t+4}, s{sT}, v{t+2}
    v_fma_f32 v{t+1}, -v{t}, v{t+2}, v{t+1}
    v_fmac_f32 v{t+5}, 0x44800000, v{t+1}
    v_mov_b32 v{t+6}, v{t+5}
    v_mov_b32 v{t+5}, s{sTAG}
    v_mov_b32 v{t+7}, s{sTAG}
    v_mov_b32 v{t}, 0
    s_mov_b64 exec, 1
    ''')
    a(f'''
    buffer_store_dwordx4 v[{t+4}:{t+7}], v{t}, s[{S_WS}:{S_WS+3}], s{sT+2} offen
    buffer_store_dwordx4 v[{t+4}:{t+7}], v{t}, s[{S_WS}:{S_WS+3}], s{sT+3} offen {SC}
    s_mov_b64 exec, -1
    ''')
    a.label('L_st_nopub')
    g.stamp_l(3)
    a(f's_cmp_lg_u32 s{sLAYER}, 0\n s_cbranch_scc1 L_noemb')
    a(f's_waitcnt vmcnt({nw})')
    g.emb_compute_publish(SC)
    a.label('L_noemb')
    a(f's_cmp_lg_u32 s{sWAVE}, 0\n s_cbranch_scc1 L_st_other')
    a(f's_mov_b32 s{sT+6}, 0')
    a.label('L_pstat')
    a(f'''
    buffer_load_dwordx4 v[{t+8}:{t+11}], v{t+15}, s[{S_WS}:{S_WS+3}], s{sT+8} offen {SC}
    s_waitcnt vmcnt(0)
    v_cmp_ne_u32 vcc, s{sTAG}, v{t+9}
    v_cmp_ne_u32_e64 s[52:53], s{sTAG}, v{t+11}
    s_or_b64 vcc, vcc, s[52:53]
    s_cmp_eq_u64 vcc, 0
    s_cbranch_scc1 L_pstat_done
    s_add_u32 s{sT+6}, s{sT+6}, 1
    s_and_b32 s{sT}, s{sT+6}, 7
    s_cmp_lg_u32 s{sT}, 0
    s_cbranch_scc1 L_pstat
    buffer_load_dwordx4 v[{t+8}:{t+11}], v{t+14}, s[{S_WS}:{S_WS+3}], s1 offen {SC}
    s_waitcnt vmcnt(0)
    v_cmp_ne_u32 vcc, s{sTAG}, v{t+9}
    v_cmp_ne_u32_e64 s[52:53], s{sTAG}, v{t+11}
    s_or_b64 vcc, vcc, s[52:53]
    s_cmp_eq_u64 vcc, 0
    s_cbranch_scc1 L_pstat_done
    s_cmp_lt_u32 s{sT+6}, 0x100000
    s_cbranch_scc1 L_pstat
    ''')
    a.label('L_pstat_done')
    g.stamp_l(4)
    a(f'''
    v_readfirstlane_b32 s{sT}, v{t+8}
    v_subrev_f32 v{t}, s{sT}, v{t+8}
    v_mul_f32 v{t+1}, v{t}, v{t}
    ''')
    g.wave_reduce([t, t+1, t+10], full=False)
    a(f'''
    v_readlane_b32 s{sT+1}, v{t}, 31
    v_readlane_b32 s{sT+2}, v{t+1}, 31
    v_readlane_b32 s{sT+3}, v{t+10}, 31
    v_mov_b32 v{t+4}, 0x3d000000
    v_mul_f32 v{t+4}, s{sT+1}, v{t+4}
    v_add_f32 v{t}, s{sT}, v{t+4}
    v_mul_f32 v{t+5}, s{sT+1}, v{t+4}
    v_sub_f32 v{t+5}, s{sT+2}, v{t+5}
    v_mov_b32 v{t+6}, s{sT+3}
    v_fmac_f32 v{t+6}, 0x45800000, v{t+5}
    v_mov_b32 v{t+7}, 0x3727c5ac
    v_fmac_f32 v{t+7}, 0x37000000, v{t+6}
    v_rsq_f32 v{t+1}, v{t+7}
    v_mov_b32 v{t+2}, {COMM + 64}
    ds_write_b64 v{t+2}, v[{t}:{t+1}]
    s_waitcnt lgkmcnt(0)
    s_branch L_st_join
    ''')
    a.label('L_st_other')
    a(f's_cmp_lg_u32 s{sLAYER}, 0\n s_cbranch_scc1 L_st_o1')
    bulk_units(0)
    a('s_branch L_st_join')
    a.label('L_st_o1')
    bulk_units(2)
    a.label('L_st_join')
    a(f'''
    v_mov_b32 v{t+2}, {COMM + 64}
    s_barrier
    ds_read_b64 v[{t}:{t+1}], v{t+2}
    s_waitcnt lgkmcnt(0)
    ''')
    g.norm_silu_pack(); g.a_store(None, SC)
    a(f'''
    s_lshl_b32 s{sT+8}, s{sLAYER}, 1
    s_add_u32 s{sT+8}, s{sT+8}, s{sB}
    s_lshl_b32 s{sT+8}, s{sT+8}, 16
    s_add_u32 s{sT+8}, s{sT+8}, {WS_FLAG}
    s_lshl_b32 s{sT+1}, s{sPXT}, 11
    s_lshl_b32 s{sT}, s{sOC0}, 2
    s_add_u32 s{sT}, s{sT}, s{sT+1}
    s_add_u32 s{sT+7}, s{sT}, s{sT+8}
    s_lshl_b32 s{sT}, s{sG}, 14
    s_add_u32 s0, s{sT+8}, s{sT}
    v_lshlrev_b32 v{t}, 14, v{vLANE}
    v_mov_b32 v{t+1}, s{sTAG}
    v_lshrrev_b32 v{t+12}, 4, v{vLANE}
    v_cmp_eq_u32 vcc, 3, v{t+12}
    v_cndmask_b32 v{t+12}, v{t+12}, 1, vcc
    s_sub_u32 s{sT}, s{sPXT}, 1
    v_add_u32 v{t+12}, s{sT}, v{t+12}
    v_med3_i32 v{t+12}, v{t+12}, 0, 7
    v_and_b32 v{t+13}, 15, v{vLANE}
    v_lshlrev_b32 v{t+13}, 7, v{t+13}
    v_lshl_add_u32 v{t+12}, v{t+12}, 11, v{t+13}
    s_lshl_b32 s{sT+4}, s{sB}, 20
    s_lshl_b32 s{sT+5}, s{sLAYER}, 21
    s_add_u32 s{sT+4}, s{sT+4}, s{sT+5}
    ''')
    g.srd(S_A, P_WS, 1 << 20, add_sgpr=sT + 4)
    a('s_waitcnt vmcnt(0)')
    a('s_barrier')
    g.stamp_l(5)
    a(f'''
    s_cmp_lg_u32 s{sWAVE}, 0
    s_cbranch_scc1 L_fl_nostore
    s_mov_b64 exec, 15
    buffer_store_dword v{t+1}, v{t}, s[{S_WS}:{S_WS+3}], s{sT+7} offen {SC}
    s_mov_b64 exec, -1
    ''')
    a.label('L_fl_nostore')
    a(f's_cmp_lg_u32 s{sLAYER}, 0\n s_cbranch_scc1 L_skip0')
    g.emb_gather_addr(TMP + 64)
    g.emb_gather_issue(TMP + 64, SC)
    g.first_frags()
    g.poll4(lambda: None, [TMP + 65, TMP + 67, TMP + 69, TMP + 71], 'pemb', SLP, retry=lambda: g.emb_gather_issue(TMP + 64, SC))
    g.emb_gather_reduce(TMP + 64)
    a(f's_cmp_eq_u32 s{sWAVE}, 0\n s_cbranch_scc1 L_skip0')
    bulk_units(2)
    a.label('L_skip0')
    a(f's_cmp_lg_u32 s{sWAVE}, 0\n s_cbranch_scc1 L_fl_join')
    g.poll4(lambda: a(f'buffer_load_dword v{t+13}, v{t+12}, s[{S_WS}:{S_WS+3}], s0 offen {SC}'), [t + 13], 'pflag', SLP)
    a.label('L_fl_join')
    a('s_barrier')
    g.stamp_l(6)
    AF = SC if 'actplain' not in EXP else ''
    g.first_acts(AF)
    a(f's_cmp_lg_u32 s{sLAYER}, 0\n s_cbranch_scc1 L_skip1')
    warm(P_W2, 0, 9216)
    a('s_waitcnt vmcnt(9)')
    a('s_branch L_go')
    a.label('L_skip1')
    a('s_waitcnt vmcnt(0)')
    a.label('L_go')
    g.stamp_l(7)
    g.conv_loop(AF)
    g.stamp_l(8)
    g.conv_reduce(2 * SLOT, vm=0)
    g.stamp_l(9)
    a(f's_cmp_lg_u32 s{sLAYER}, 0\n s_cbranch_scc1 L_final')
    g.load_gb(P_G2, P_B2)
    for c in range(8):
        a(f'v_add_f32 v{vVAL+2*c}, s{sEMB+c}, v{vVAL+2*c}\n v_add_f32 v{vVAL+2*c+1}, s{sEMB+c}, v{vVAL+2*c+1}')
    a(f's_mov_b32 s{sLAYER}, 1')
    g.zero_acc()
    g.unpack_gb()
    a('s_branch L_layer')
    a.label('L_final')
    g.srd(S_OUT, P_OUT, 2 << 20)
    g.out_store()
    a(f'''
    s_lshr_b32 s{sT}, s2, 3
    s_or_b32 s{sT}, s{sT}, s{sG}
    s_or_b32 s{sT}, s{sT}, s{sWAVE}
    s_cmp_lg_u32 s{sT}, 0
    s_cbranch_scc1 L_noep
    s_lshl_b32 s{sT}, s{sB}, 8
    s_add_u32 s{sT}, s{sT}, {WS_EPOCH}
    v_mov_b32 v{t}, 0
    v_mov_b32 v{t+1}, s{sTAG}
    s_mov_b64 exec, 1
    buffer_store_dword v{t+1}, v{t}, s[{S_WS}:{S_WS+3}], s{sT} offen
    s_mov_b64 exec, -1
    ''')
    a.label('L_noep')
    if STAMPS: a('s_waitcnt vmcnt(0)')
    g.stamp(15); g.stamp_flush(0)
    g.end_kernel('L_exit')
    txt = hdr + a.text() + '.section .rodata,"a"\n' + kd(name, NVGPR, 64)
    return txt

if __name__ == '__main__':
    if '--stamps' in sys.argv:
        STAMPS = True; sys.argv.remove('--stamps')
    for x in list(sys.argv):
        if x.startswith('--exp='):
            EXP = set(x[6:].split(',')); sys.argv.remove(x)
    mode = sys.argv[1] if len(sys.argv) > 1 else 'baseline'
    out = sys.argv[2] if len(sys.argv) > 2 else 'standalone__adm_resblock__diffusion.s'
    txt = {'baseline': gen_baseline, 'fused': gen_fused}[mode]()
    open(out, 'w').write(txt)
    print('wrote', out, len(txt))
```

```python
import sys
from asmlib import Asm, Ins, regs_of

WS_A1   = 0
WS_A2   = 2 << 20
WS_H    = 4 << 20
WS_STAT = 8 << 20
WS_EMB  = (8 << 20) + (64 << 10)
WS_FLAG = (9 << 20)
WS_EPOCH = (8 << 20) + (576 << 10)
WS_STATB = (8 << 20) + (640 << 10)
WS_STAMP = 10 << 20
WS_SIZE = 16 << 20

SLOT = 36864
DUMMY = 4 * SLOT
LDS_BYTES = 163840

S_W, S_A, S_X, S_WS, S_OUT = 4, 8, 12, 16, 20
sWAVE, sB, sG, sOCT, sPXT, sOC0, sY0 = 3, 24, 25, 26, 27, 28, 29
sTAG, sLAYER = 30, 31
P_X, P_T, P_G1, P_B1, P_W1, P_WE, P_G2, P_B2, P_W2, P_OUT, P_DBG, P_WS = [32 + 2 * i for i in range(12)]
sSELE, sSELO = 56, 57
sQ, sSOFW, sSOFA, sWOFF, sRECB, sW0, sRECA, sAREC1, sITER = 58, 59, 60, 61, 62, 63, 64, 65, 66
sT = 67
sGAM = 76
sBET = 84
sEMB = 92
sXO = 0

vLANE = 1
vDMA = [2, 16, 17, 18, 19, 20, 21, 22, 23]
vRD = 3
vRD2 = 24
vACT, vTOP, vBOT = 11, 12, 13
vSTAMP = 14
vXA = 15
vT = 232
vF = 32
vRAW = 68
vR = [104, 152]
vS = 200
vXPK = 248
TMP = 104
vVAL = 200
TMP2 = 216
NVGPR = 256
STAMPS = False
EXP = set()
DBGWG = 77

def r4(b): return f'v[{b}:{b+3}]'

class Gen:
    def __init__(self):
        self.a = Asm()
        self.uid = 0
    def lbl(self, s):
        self.uid += 1
        return f'L_{s}_{self.uid}'
    def stamp(self, i, cyc=False):
        if not STAMPS: return
        if 'dbg' in EXP: i = {0: 16, 1: 17, 2: 0, 15: 1}[i]
        self.a(f'''
        {'s_memtime' if cyc else 's_memrealtime'} s[100:101]
        s_waitcnt lgkmcnt(0)
        v_writelane_b32 v{vSTAMP}, s100, {i}
        ''')
    def stamp_l(self, i):
        if not STAMPS: return
        self.a(f'''
        s_memrealtime s[100:101]
        s_mul_i32 m0, s{sLAYER}, {7 if 'dbg' in EXP else 16}
        s_add_u32 m0, m0, {i - 1 if 'dbg' in EXP else i}
        s_waitcnt lgkmcnt(0)
        s_nop 3
        v_writelane_b32 v{vSTAMP}, s100, m0
        ''')
    def stamp_flush(self, k):
        if not STAMPS: return
        if 'dbg' in EXP:
            L = self.lbl('dbgskip')
            self.a(f'''
            s_cmp_lg_u32 s2, {DBGWG}
            s_cbranch_scc1 {L}
            s_cmp_lg_u32 s{sWAVE}, 0
            s_cbranch_scc1 {L}
            v_readlane_b32 s100, v{vSTAMP}, 16
            s_mov_b32 s{S_WS}, s{P_X}
            s_mov_b32 s{S_WS+1}, s{P_X+1}
            s_mov_b32 s{S_WS+2}, 256
            v_lshlrev_b32 v{vT}, 2, v{vLANE}
            v_subrev_u32 v{vSTAMP}, s100, v{vSTAMP}
            buffer_store_dword v{vSTAMP}, v{vT}, s[{S_WS}:{S_WS+3}], 0 offen
            ''')
            self.a.label(L)
            return
        self.srd(S_WS, P_WS, WS_SIZE)
        self.a(f'''
        s_lshl_b32 s100, s2, 10
        s_add_u32 s100, s100, {WS_STAMP + k * (256 << 10)}
        v_lshlrev_b32 v{vT}, 2, v0
        buffer_store_dword v{vSTAMP}, v{vT}, s[{S_WS}:{S_WS+3}], s100 offen
        ''')

    def setup(self, exit_label):
        self.a(f'''
        s_cmp_ge_u32 s2, 256
        s_cbranch_scc1 {exit_label}
        s_load_dwordx16 s[32:47], s[0:1], 0
        s_load_dwordx8 s[48:55], s[0:1], 64
        v_lshrrev_b32 v{vT}, 6, v0
        v_and_b32 v{vLANE}, 63, v0
        v_readfirstlane_b32 s{sWAVE}, v{vT}
        s_and_b32 s{sT}, s2, 7
        s_lshr_b32 s{sT+1}, s2, 3
        s_lshr_b32 s{sB}, s{sT}, 2
        s_and_b32 s{sG}, s{sT}, 3
        s_and_b32 s{sOCT}, s{sT+1}, 3
        s_lshr_b32 s{sPXT}, s{sT+1}, 2
        s_lshl_b32 s{sOC0}, s{sG}, 7
        s_lshl_b32 s{sT+2}, s{sOCT}, 5
        s_add_u32 s{sOC0}, s{sOC0}, s{sT+2}
        s_lshl_b32 s{sY0}, s{sPXT}, 2
        s_mov_b32 s{sSELE}, 0x07060100
        s_mov_b32 s{sSELO}, 0x05040302
        s_mov_b32 s{sTAG}, 1
        ''')
    def srd(self, d, ptr, size, add_sgpr=None, add_imm=0):
        a = self.a
        if add_sgpr is None and add_imm == 0:
            a(f's_mov_b32 s{d}, s{ptr}\n s_mov_b32 s{d+1}, s{ptr+1}')
        else:
            if add_sgpr is not None:
                a(f's_add_u32 s{d}, s{ptr}, s{add_sgpr}\n s_addc_u32 s{d+1}, s{ptr+1}, 0')
                if add_imm:
                    a(f's_add_u32 s{d}, s{d}, {add_imm}\n s_addc_u32 s{d+1}, s{d+1}, 0')
            else:
                a(f's_add_u32 s{d}, s{ptr}, {add_imm}\n s_addc_u32 s{d+1}, s{ptr+1}, 0')
        a(f's_mov_b32 s{d+2}, {size}\n s_mov_b32 s{d+3}, 0x00020000')

    def xtile_addr(self):
        self.a(f'''
        s_lshl_b32 s{sT}, s{sB}, 20
        s_lshl_b32 s{sT+1}, s{sWAVE}, 3
        s_add_u32 s{sT+1}, s{sT+1}, s{sOC0}
        s_lshl_b32 s{sT+1}, s{sT+1}, 11
        s_add_u32 s{sT}, s{sT}, s{sT+1}
        s_lshl_b32 s{sT+1}, s{sY0}, 6
        s_add_u32 s{sT}, s{sT}, s{sT+1}
        v_lshlrev_b32 v{vXA}, 2, v{vLANE}
        v_add_u32 v{vXA}, s{sT}, v{vXA}
        ''')
    def xsoffs(self):
        self.a(f's_movk_i32 s{sT+1}, 4096\n s_movk_i32 s{sT+2}, 8192\n s_movk_i32 s{sT+3}, 12288')
        return ['0', f's{sT+1}', f's{sT+2}', f's{sT+3}']
    def xtile_load(self):
        so = self.xsoffs()
        for c in range(8):
            self.a(f'buffer_load_dword v{vXPK+c}, v{vXA}, s[{S_X}:{S_X+3}], {so[c//2]} offen offset:{(c%2)*2048}')
    def xtile_unpack(self):
        for c in range(8):
            self.a(f'v_lshlrev_b32 v{vVAL+2*c}, 16, v{vXPK+c}\n v_and_b32 v{vVAL+2*c+1}, 0xffff0000, v{vXPK+c}')

    def wave_reduce(self, regs, full=True):
        steps = ['row_shr:1 row_mask:0xf bank_mask:0xf bound_ctrl:0', 'row_shr:2 row_mask:0xf bank_mask:0xf bound_ctrl:0',
                 'row_shr:4 row_mask:0xf bank_mask:0xf bound_ctrl:0', 'row_shr:8 row_mask:0xf bank_mask:0xf bound_ctrl:0',
                 'row_bcast:15 row_mask:0xa bank_mask:0xf']
        if full: steps.append('row_bcast:31 row_mask:0xc bank_mask:0xf')
        for st in steps:
            for r in regs:
                self.a(f'v_add_f32_dpp v{r}, v{r}, v{r} {st}')

    def wave_stats(self):
        a = self.a
        t = vT
        a(f'v_readfirstlane_b32 s{sT}, v{vVAL}')
        D = TMP2
        for i in range(16):
            a(f'v_subrev_f32 v{D+i}, s{sT}, v{vVAL+i}')
        a(f'v_add_f32 v{t}, v{D}, v{D+1}\n v_mul_f32 v{t+1}, v{D}, v{D}\n v_mul_f32 v{t+3}, v{D+1}, v{D+1}\n v_add_f32 v{t+2}, v{D+2}, v{D+3}')
        for i in range(2, 16):
            a(f'v_fmac_f32 v{t+1+2*(i&1)}, v{D+i}, v{D+i}')
            if i >= 4: a(f'v_add_f32 v{t+2*(i&1)}, v{t+2*(i&1)}, v{D+i}')
        a(f'v_add_f32 v{t}, v{t}, v{t+2}\n v_add_f32 v{t+1}, v{t+1}, v{t+3}')
        self.wave_reduce([t, t+1])
        a(f'''
        v_readlane_b32 s{sT+1}, v{t}, 63
        v_readlane_b32 s{sT+2}, v{t+1}, 63
        v_mov_b32 v{t+5}, s{sTAG}
        v_mov_b32 v{t+7}, s{sTAG}
        v_mov_b32 v{t}, 0x3a800000
        v_mul_f32 v{t}, s{sT+1}, v{t}
        v_add_f32 v{t+4}, s{sT}, v{t}
        v_mul_f32 v{t+1}, s{sT+1}, v{t}
        v_sub_f32 v{t+6}, s{sT+2}, v{t+1}
        ''')
    def stat_base(self, dst, layer):
        a = self.a
        a(f's_and_b32 s{dst}, s2, 7\n s_lshl_b32 s{dst}, s{dst}, 11')
        if layer is None:
            a(f's_lshl_b32 s{sT+7}, s{sLAYER}, 14\n s_add_u32 s{dst}, s{dst}, s{sT+7}\n s_add_u32 s{dst}, s{dst}, {WS_STAT}')
        else:
            a(f's_add_u32 s{dst}, s{dst}, {WS_STAT + layer * 16384}')
    def stats_publish(self, layer, flags=''):
        a = self.a
        self.stat_base(sT + 8, layer)
        a(f'''
        s_lshr_b32 s{sT+1}, s2, 3
        s_lshl_b32 s{sT+1}, s{sT+1}, 2
        s_add_u32 s{sT+1}, s{sT+1}, s{sWAVE}
        s_lshl_b32 s{sT+1}, s{sT+1}, 4
        s_add_u32 s{sT}, s{sT+8}, s{sT+1}
        v_mov_b32 v{vT}, 0
        s_mov_b64 exec, 1
        buffer_store_dwordx4 v[{vT+4}:{vT+7}], v{vT}, s[{S_WS}:{S_WS+3}], s{sT} offen {flags}
        s_mov_b64 exec, -1
        v_lshlrev_b32 v{vT+15}, 4, v{vLANE}
        ''')
    def stats_load_issue(self, flags=''):
        self.a(f'''
        buffer_load_dwordx4 v[{vT+4}:{vT+7}], v{vT+15}, s[{S_WS}:{S_WS+3}], s{sT+8} offen {flags}
        buffer_load_dwordx4 v[{vT+8}:{vT+11}], v{vT+15}, s[{S_WS}:{S_WS+3}], s{sT+8} offen offset:1024 {flags}
        ''')
    def poll4(self, issue, regs, name, slp='', retry=None):
        a = self.a
        L = self.lbl(name); D = self.lbl(name + '_done')
        a(f's_mov_b32 s{sT+6}, 0')
        a.label(L)
        issue()
        a('s_waitcnt vmcnt(0)')
        a(f'v_cmp_ne_u32 vcc, s{sTAG}, v{regs[0]}')
        for r in regs[1:]:
            a(f'v_cmp_ne_u32_e64 s[52:53], s{sTAG}, v{r}')
            a('s_or_b64 vcc, vcc, s[52:53]')
        a(f's_cmp_eq_u64 vcc, 0\n s_cbranch_scc1 {D}')
        if slp: a(slp)
        if retry: retry()
        a(f'''
        s_add_u32 s{sT+6}, s{sT+6}, 1
        s_cmp_lt_u32 s{sT+6}, 0x40000
        s_cbranch_scc1 {L}
        ''')
        a.label(D)
    def stats_combine(self):
        a = self.a
        t = vT
        a(f'''
        v_readfirstlane_b32 s{sT}, v{t+4}
        v_add_f32 v{t+2}, v{t+6}, v{t+10}
        v_subrev_f32 v{t+4}, s{sT}, v{t+4}
        v_subrev_f32 v{t+8}, s{sT}, v{t+8}
        v_add_f32 v{t}, v{t+4}, v{t+8}
        v_mul_f32 v{t+1}, v{t+4}, v{t+4}
        v_fmac_f32 v{t+1}, v{t+8}, v{t+8}
        ''')
        self.wave_reduce([t, t+1, t+2])
        a(f'''
        v_readlane_b32 s{sT+1}, v{t}, 63
        v_readlane_b32 s{sT+2}, v{t+1}, 63
        v_readlane_b32 s{sT+3}, v{t+2}, 63
        v_mov_b32 v{t+4}, 0x3c000000
        v_mul_f32 v{t+4}, s{sT+1}, v{t+4}
        v_add_f32 v{t}, s{sT}, v{t+4}
        v_mul_f32 v{t+5}, s{sT+1}, v{t+4}
        v_sub_f32 v{t+5}, s{sT+2}, v{t+5}
        v_mov_b32 v{t+6}, s{sT+3}
        v_fmac_f32 v{t+6}, 0x44800000, v{t+5}
        v_mov_b32 v{t+7}, 0x3727c5ac
        v_fmac_f32 v{t+7}, 0x37000000, v{t+6}
        v_rsq_f32 v{t+1}, v{t+7}
        ''')
    def load_gb(self, pg, pb):
        self.a(f'''
        s_lshl_b32 s{sT}, s{sWAVE}, 3
        s_add_u32 s{sT}, s{sT}, s{sOC0}
        s_lshl_b32 s{sT}, s{sT}, 1
        s_add_u32 s{sT+1}, s{pg}, s{sT}
        s_addc_u32 s{sT+2}, s{pg+1}, 0
        s_add_u32 s{sT+3}, s{pb}, s{sT}
        s_addc_u32 s{sT+4}, s{pb+1}, 0
        s_load_dwordx4 s[{sGAM+4}:{sGAM+7}], s[{sT+1}:{sT+2}], 0
        s_load_dwordx4 s[{sBET+4}:{sBET+7}], s[{sT+3}:{sT+4}], 0
        ''')
    def unpack_gb(self):
        a = self.a
        a('s_waitcnt lgkmcnt(0)')
        for base in (sGAM, sBET):
            for i in range(2):
                a(f's_lshl_b32 s{base+2*i}, s{base+4+i}, 16\n s_and_b32 s{base+2*i+1}, s{base+4+i}, 0xffff0000')
            a(f'''
            s_mov_b32 s{sT}, s{base+6}
            s_mov_b32 s{sT+1}, s{base+7}
            s_lshl_b32 s{base+4}, s{sT}, 16
            s_and_b32 s{base+5}, s{sT}, 0xffff0000
            s_lshl_b32 s{base+6}, s{sT+1}, 16
            s_and_b32 s{base+7}, s{sT+1}, 0xffff0000
            ''')
    def norm_silu_pack(self):
        a = self.a
        SC, SH = TMP + 8, TMP + 16
        Z, E_ = TMP + 24, TMP + 40
        for c in range(8): a(f'v_mul_f32 v{SC+c}, s{sGAM+c}, v{vT+1}')
        for c in range(8): a(f'v_mov_b32 v{SH+c}, s{sBET+c}')
        for c in range(8): a(f'v_fma_f32 v{SH+c}, -v{vT}, v{SC+c}, v{SH+c}')
        for i in range(16): a(f'v_fma_f32 v{Z+i}, v{vVAL+i}, v{SC+i//2}, v{SH+i//2}')
        for i in range(16): a(f'v_mul_f32 v{E_+i}, 0xbfb8aa3b, v{Z+i}')
        for i in range(16): a(f'v_exp_f32 v{E_+i}, v{E_+i}')
        for i in range(16): a(f'v_add_f32 v{E_+i}, 1.0, v{E_+i}')
        for i in range(16): a(f'v_rcp_f32 v{E_+i}, v{E_+i}')
        for i in range(16): a(f'v_mul_f32 v{Z+i}, v{Z+i}, v{E_+i}')
        for e in range(2):
            for cp in range(4):
                a(f'v_cvt_pk_bf16_f32 v{TMP+4*e+cp}, v{Z+2*(2*cp)+e}, v{Z+2*(2*cp+1)+e}')
    def a_store(self, layer, flags=''):
        a = self.a
        a(f'''
        s_lshr_b32 s{sT}, s{sOC0}, 3
        s_add_u32 s{sT}, s{sT}, s{sWAVE}
        s_lshl_b32 s{sT}, s{sT}, 14
        s_lshl_b32 s{sT+1}, s{sB}, 20
        s_add_u32 s{sT}, s{sT}, s{sT+1}
        s_lshl_b32 s{sT+1}, s{sY0}, 9
        s_add_u32 s{sT}, s{sT}, s{sT+1}
        ''')
        if layer is None:
            a(f's_lshl_b32 s{sT+1}, s{sLAYER}, 21\n s_add_u32 s{sT}, s{sT}, s{sT+1}')
        elif layer:
            a(f's_add_u32 s{sT}, s{sT}, {layer << 21}')
        a(f'''
        v_lshrrev_b32 v{vT+2}, 4, v{vLANE}
        v_and_b32 v{vT+3}, 15, v{vLANE}
        v_lshlrev_b32 v{vT+2}, 9, v{vT+2}
        v_lshl_add_u32 v{vT+2}, v{vT+3}, 4, v{vT+2}
        buffer_store_dwordx4 v[{TMP}:{TMP+3}], v{vT+2}, s[{S_WS}:{S_WS+3}], s{sT} offen {flags}
        buffer_store_dwordx4 v[{TMP+4}:{TMP+7}], v{vT+2}, s[{S_WS}:{S_WS+3}], s{sT} offen offset:256 {flags}
        ''')

    def emb_load(self):
        a = self.a
        B = TMP + 56
        self.srd(S_A, P_T, 3072)
        self.srd(S_OUT, P_WE, 786432)
        a(f'''
        s_lshl_b32 s{sT}, s{sPXT}, 2
        s_add_u32 s{sT}, s{sT}, s{sWAVE}
        s_mul_i32 s{sT}, s{sT}, 24
        v_lshrrev_b32 v{B+12}, 4, v{vLANE}
        v_mul_u32_u24 v{B+12}, 6, v{B+12}
        v_add_u32 v{B+12}, s{sT}, v{B+12}
        s_mul_i32 s{sT+1}, s{sB}, 1536
        v_lshlrev_b32 v{B+13}, 1, v{B+12}
        buffer_load_dwordx3 v[{B+8}:{B+10}], v{B+13}, s[{S_A}:{S_A+3}], s{sT+1} offen
        v_lshlrev_b32 v{B+15}, 10, v{B+12}
        v_and_b32 v{B+14}, 15, v{vLANE}
        v_lshl_add_u32 v{B+15}, v{B+14}, 2, v{B+15}
        s_lshl_b32 s{sT+1}, s{sOC0}, 1
        s_add_u32 s{sT+2}, s{sT+1}, 3072
        ''')
        for k in range(6):
            a(f'buffer_load_dword v{B+k}, v{B+15}, s[{S_OUT}:{S_OUT+3}], s{sT+1+k//3} offen offset:{(k%3)*1024}')
    def emb_compute_publish(self, flags=''):
        a = self.a
        B = TMP + 56
        S = B + 16
        E_ = B + 24
        for k in range(6):
            src = B + 8 + k // 2
            if k % 2 == 0: a(f'v_lshlrev_b32 v{S+k}, 16, v{src}')
            else: a(f'v_and_b32 v{S+k}, 0xffff0000, v{src}')
        for k in range(6): a(f'v_mul_f32 v{E_+k}, 0xbfb8aa3b, v{S+k}')
        for k in range(6): a(f'v_exp_f32 v{E_+k}, v{E_+k}')
        for k in range(6): a(f'v_add_f32 v{E_+k}, 1.0, v{E_+k}')
        for k in range(6): a(f'v_rcp_f32 v{E_+k}, v{E_+k}')
        for k in range(6): a(f'v_mul_f32 v{S+k}, v{S+k}, v{E_+k}')
        A0, A1_ = E_ + 8, E_ + 10
        for k in range(6):
            a(f'v_lshlrev_b32 v{E_+12}, 16, v{B+k}\n v_and_b32 v{E_+13}, 0xffff0000, v{B+k}')
            if k == 0:
                a(f'v_mul_f32 v{A0}, v{E_+12}, v{S}\n v_mul_f32 v{A1_}, v{E_+13}, v{S}')
            else:
                a(f'v_fmac_f32 v{A0}, v{E_+12}, v{S+k}\n v_fmac_f32 v{A1_}, v{E_+13}, v{S+k}')
        for sw in ('v_permlane32_swap_b32', 'v_permlane16_swap_b32'):
            a(f'''
            v_mov_b32 v{E_+12}, v{A0}
            v_mov_b32 v{E_+13}, v{A1_}
            {sw} v{E_+12}, v{A0}
            {sw} v{E_+13}, v{A1_}
            v_add_f32 v{A0}, v{A0}, v{E_+12}
            v_add_f32 v{A1_}, v{A1_}, v{E_+13}
            ''')
        a(f'''
        v_mov_b32 v{A0+1}, s{sTAG}
        v_mov_b32 v{A1_+1}, s{sTAG}
        s_lshl_b32 s{sT}, s{sB}, 4
        s_lshr_b32 s{sT+1}, s{sOC0}, 5
        s_add_u32 s{sT}, s{sT}, s{sT+1}
        s_lshl_b32 s{sT}, s{sT}, 13
        s_lshl_b32 s{sT+1}, s{sPXT}, 2
        s_add_u32 s{sT+1}, s{sT+1}, s{sWAVE}
        s_lshl_b32 s{sT+1}, s{sT+1}, 4
        s_add_u32 s{sT}, s{sT}, s{sT+1}
        s_add_u32 s{sT}, s{sT}, {WS_EMB}
        v_lshlrev_b32 v{E_+12}, 9, v{vLANE}
        s_mov_b64 exec, 0xffff
        buffer_store_dwordx4 v[{A0}:{A0+3}], v{E_+12}, s[{S_WS}:{S_WS+3}], s{sT} offen {flags}
        s_mov_b64 exec, -1
        ''')
    def emb_gather_addr(self, base):
        self.a(f'''
        s_lshl_b32 s{sT+8}, s{sB}, 4
        s_lshr_b32 s{sT+1}, s{sOC0}, 5
        s_add_u32 s{sT+8}, s{sT+8}, s{sT+1}
        s_lshl_b32 s{sT+8}, s{sT+8}, 13
        s_lshl_b32 s{sT+1}, s{sWAVE}, 11
        s_add_u32 s{sT+8}, s{sT+8}, s{sT+1}
        s_add_u32 s{sT+8}, s{sT+8}, {WS_EMB}
        v_lshlrev_b32 v{base+8}, 4, v{vLANE}
        ''')
    def emb_gather_issue(self, base, flags=''):
        self.a(f'''
        buffer_load_dwordx4 v[{base}:{base+3}], v{base+8}, s[{S_WS}:{S_WS+3}], s{sT+8} offen {flags}
        buffer_load_dwordx4 v[{base+4}:{base+7}], v{base+8}, s[{S_WS}:{S_WS+3}], s{sT+8} offen offset:1024 {flags}
        ''')
    def emb_gather_reduce(self, base):
        self.wave_reduce([base, base+2, base+4, base+6], full=False)
        for q in range(2):
            for ps in range(2):
                for e in range(2):
                    self.a(f'v_readlane_b32 s{sEMB + 4*q + 2*ps + e}, v{base + 4*q + 2*e}, {31 + 32*ps}')

    def conv_addr_dma(self):
        t = vT
        self.a(f'''
        s_and_b32 s{sT}, s{sWAVE}, 1
        s_lshl_b32 s{sT}, s{sT}, 3
        v_lshrrev_b32 v{t}, 3, v{vLANE}
        v_add_u32 v{t}, s{sT}, v{t}
        v_lshrrev_b32 v{t+1}, 1, v{t}
        v_lshrrev_b32 v{t+2}, 3, v{t}
        v_xor_b32 v{t+2}, v{t+2}, v{t}
        v_and_b32 v{t+2}, 1, v{t+2}
        v_lshl_add_u32 v{t+2}, v{t+2}, 3, v{t+1}
        v_and_b32 v{t+3}, 7, v{vLANE}
        v_xor_b32 v{t+3}, v{t+3}, v{t+1}
        v_mul_u32_u24 v{vDMA[0]}, 9216, v{t+2}
        v_lshl_add_u32 v{vDMA[0]}, v{t+3}, 4, v{vDMA[0]}
        s_lshr_b32 s{sT+1}, s{sWAVE}, 1
        s_mul_i32 s{sT+2}, s{sT+1}, 1152
        s_add_u32 s{sT+2}, s{sT+2}, 4096
        v_add_u32 v{vDMA[0]}, s{sT+2}, v{vDMA[0]}
        s_mul_i32 s{sW0}, s{sOC0}, 9216
        s_add_u32 s{sW0}, s{sW0}, 4096
        s_mul_i32 s{sWOFF}, s{sWAVE}, 9216
        s_mov_b32 s{S_W+3}, 0x00020000
        ''')
        for k in range(1, 9):
            self.a(f'v_add_u32 v{vDMA[k]}, {128*k - 1024*(k%4)}, v{vDMA[0]}')
    def w_srd(self, ptr):
        return [f's_sub_u32 s{S_W}, s{ptr}, 8192', f's_subb_u32 s{S_W+1}, s{ptr+1}, 0']
    WREC = 4718592 + 8192
    def dma_op(self, k, slot):
        ops = []
        if k % 4 == 0: ops.append(f's_add_u32 m0, s{sWOFF}, {slot*SLOT + 1024*k}')
        ops.append(f'buffer_load_dwordx4 v{vDMA[k]}, s[{S_W}:{S_W+3}], s{sSOFW} offen offset:{1024*(k%4)} lds')
        return ops
    UOFF = [0, 147456, 2304, 149760]
    def dma_unit(self, slot, soff_base, uoff):
        self.a(f's_add_u32 s{sSOFW}, s{soff_base}, {uoff}')
        for k in range(9):
            for o in self.dma_op(k, slot): self.a(o)
    def conv_addr_rd(self):
        a = self.a
        t = vT
        a(f'''
        v_and_b32 v{t}, 15, v{vLANE}
        v_lshrrev_b32 v{t+1}, 2, v{t}
        v_lshrrev_b32 v{t+2}, 3, v{t}
        v_xor_b32 v{t+1}, v{t+1}, v{t+2}
        v_and_b32 v{t+1}, 1, v{t+1}
        v_and_b32 v{t+2}, 7, v{t}
        v_lshl_add_u32 v{t+1}, v{t+2}, 1, v{t+1}
        v_lshrrev_b32 v{t+7}, 3, v{t+1}
        v_mul_u32_u24 v{t+7}, 9216, v{t+7}
        v_and_b32 v{t+1}, 7, v{t+1}
        v_lshl_add_u32 v{t+1}, v{t+1}, 7, v{t+7}
        s_lshr_b32 s{sT+1}, s{sWAVE}, 1
        s_mul_i32 s{sT+2}, s{sT+1}, {18432 - 9216}
        v_add_u32 v{t+1}, s{sT+2}, v{t+1}
        v_lshrrev_b32 v{t+3}, 4, v{vLANE}
        v_mul_u32_u24 v{t+4}, 9, v{t+3}
        s_mul_i32 s{sT}, s{sWAVE}, 36
        v_add_u32 v{t+4}, s{sT}, v{t+4}
        ''')
        for j in range(8):
            a(f'''
            v_add_u32 v{t+5}, {j}, v{t+4}
            v_lshrrev_b32 v{t+6}, 3, v{t+5}
            v_and_b32 v{t+5}, 7, v{t+5}
            v_xor_b32 v{t+5}, v{t+5}, v{t+2}
            v_lshl_add_u32 v{t+6}, v{t+6}, 10, v{t+1}
            v_lshl_add_u32 v{vRD+j}, v{t+5}, 4, v{t+6}
            v_add_u32 v{vRD2+j}, {2*SLOT}, v{vRD+j}
            ''')
    def conv_addr_act(self):
        t = vT
        self.a(f'''
        v_and_b32 v{t}, 15, v{vLANE}
        v_lshrrev_b32 v{t+3}, 4, v{vLANE}
        v_lshlrev_b32 v{vACT}, 4, v{t}
        v_lshl_add_u32 v{vACT}, v{t+3}, 14, v{vACT}
        s_lshl_b32 s{sT}, s{sWAVE}, 16
        s_lshl_b32 s{sT+1}, s{sY0}, 9
        s_add_u32 s{sT}, s{sT}, s{sT+1}
        v_add_u32 v{vACT}, s{sT}, v{vACT}
        s_cmp_eq_u32 s{sPXT}, 0
        s_cselect_b32 s{sT}, 0x40000000, -512
        v_add_u32 v{vTOP}, s{sT}, v{vACT}
        s_cmp_eq_u32 s{sPXT}, 7
        s_cselect_b32 s{sT}, 0x40000000, 2048
        v_add_u32 v{vBOT}, s{sT}, v{vACT}
        ''')
    def act_op(self, R, j, e, flags=''):
        if j == 0: ad, off = vTOP, 0
        elif j == 5: ad, off = vBOT, 0
        else: ad, off = vACT, (j - 1) * 512
        return f'buffer_load_dwordx4 {r4(R+8*j+4*e)}, v{ad}, s[{S_A}:{S_A+3}], s{sSOFA} offen offset:{off + 256*e} {flags}'
    def raw_reads(self, slot):
        base = vRD if slot < 2 else vRD2
        off = (slot % 2) * SLOT
        return [f'ds_read_b128 {r4(vRAW+4*j)}, v{base + (j % 8)} offset:{off + (1024 if j == 8 else 0)}' for j in range(9)]
    def perms(self, kx):
        ops = []
        for ky in range(3):
            t = 3 * ky + kx
            for m in range(4):
                aidx = (18 * m + t) // 2; bidx = (18 * m + 9 + t) // 2
                sel = sSELE if t % 2 == 0 else sSELO
                ops.append(f'v_perm_b32 v{vF+4*t+m}, v{vRAW+bidx}, v{vRAW+aidx}, s{sel}')
        return ops
    def shifts(self, R, plus):
        ops = []
        for j in range(6):
            for i in range(4):
                if plus: ops.append(f'v_mov_b32_dpp v{vS+24+4*j+i}, v{R+8*j+i} row_shl:1 row_mask:0xf bank_mask:0xf bound_ctrl:0')
                else: ops.append(f'v_mov_b32_dpp v{vS+4*j+i}, v{R+8*j+4+i} row_shr:1 row_mask:0xf bank_mask:0xf bound_ctrl:0')
        return ops
    def mfmas(self, ob, R):
        ops = []
        for kx in (1, 0, 2):
            for ky in range(3):
                eorder = (0, 1) if kx == 1 else ((1, 0) if kx == 0 else (0, 1))
                for e in eorder:
                    for i in range(4):
                        j = i + ky
                        if kx == 1: X = R + 8*j + 4*e
                        elif kx == 0: X = (R + 8*j) if e == 1 else (vS + 4*j)
                        else: X = (R + 8*j + 4) if e == 0 else (vS + 24 + 4*j)
                        acc = 32*ob + 8*i + 4*e
                        ops.append(f'v_mfma_f32_16x16x32_bf16 a[{acc}:{acc+3}], {r4(vF+4*(3*ky+kx))}, {r4(X)}, a[{acc}:{acc+3}]')
        return ops

    def body_stream(self, aflags=''):
        NG = 288
        chains = []
        def chain(items): chains.append(list(items))
        def lin(ops, g0, g1, cost=1, slack=6):
            n = len(ops)
            return [([o] if isinstance(o, str) else o, g0 + (k * (g1 - g0)) // n, min(g0 + (k * (g1 - g0)) // n + slack, g1), cost) for k, o in enumerate(ops)]
        for st in range(4):
            g = 72 * st
            rs = (st + 1) % 4
            c = lin(self.perms(2), g, g + 7, slack=2)
            c += [(['@BAR'], g + 7, g + 8, 1)]
            c += lin(self.raw_reads(rs), g + 8, g + 17, slack=3)
            c += [(['s_waitcnt lgkmcnt(0)'], g + 26, g + 28, 1)]
            c += lin(self.perms(1), g + 26, g + 47, slack=6)
            c += lin(self.perms(0), g + 48, g + 71, slack=6)
            chain(c)
        for P in range(2):
            g = 144 * P
            R, RN = vR[P], vR[1 - P]
            chain(lin(self.shifts(R, False), g + 2, g + 27, slack=4) + lin(self.shifts(R, True), g + 27, g + 51, slack=4))
        vm = []
        acts = [(j, e) for j in range(6) for e in range(2)]
        pat = ['ADADADADADADADA', 'ADADAADDDDDDDDD']
        dk = 0
        for P in range(2):
            RN = vR[1 - P]
            ai = 0
            for ob in range(2):
                g = 144 * P + 72 * ob
                for idx, ch in enumerate(pat[ob]):
                    gpos = g + 9 + (idx * 62) // 15
                    if ch == 'A':
                        pre = []
                        if ai == 0:
                            pre = [f's_mov_b32 s{S_A+2}, {1<<20}'] if P == 0 else [f's_mov_b32 s{S_A+2}, s{sAREC1}']
                            vm.append((pre, gpos - 2, gpos, 1))
                        j, e = acts[ai]
                        vm.append(([self.act_op(RN, j, e, aflags)], gpos, gpos + 3, 3)); ai += 1
                        if ai == 12: vm.append(([f's_add_u32 s{sSOFA}, s{sSOFA}, 262144'], gpos, gpos + 4, 1))
                    else:
                        u, k = divmod(dk, 9)
                        if k == 0:
                            if u == 0: vm.append(([f's_mov_b32 s{S_W+2}, s{sRECA}'], gpos - 3, gpos, 1))
                            if u == 2: vm.append(([f's_mov_b32 s{S_W+2}, s{sRECB}'], gpos - 3, gpos, 1))
                            if u > 0: vm.append(([f's_add_u32 s{sSOFW}, s{sSOFW}, {self.UOFF[u] - self.UOFF[u-1]}'], gpos - 3, gpos, 1))
                        for o in self.dma_op(k, u):
                            if o.startswith('s_'): vm.append(([o], gpos - 2, gpos, 1))
                            else: vm.append(([o], gpos, gpos + 3, 3))
                        dk += 1
        assert dk == 36
        chain(vm)
        heads = [0] * len(chains)
        gaps = [[] for _ in range(NG)]
        debt = 0
        CAP = 2
        for gi in range(NG):
            cap = CAP - debt; debt = 0
            while True:
                cand = [(chains[c][heads[c]][2], c) for c in range(len(chains)) if heads[c] < len(chains[c]) and chains[c][heads[c]][1] <= gi]
                if not cand: break
                cand.sort()
                dl, c = cand[0]
                ops, e_, l_, cost = chains[c][heads[c]]
                if cap <= 0 and dl > gi: break
                gaps[gi] += ops; heads[c] += 1; cap -= cost
            if cap < 0: debt = min(-cap, 2)
        for c in range(len(chains)): assert heads[c] == len(chains[c]), 'unscheduled'
        mf = []
        for st in range(4): mf += self.mfmas(st & 1, vR[st >> 1])
        out = []
        for i, m in enumerate(mf):
            out.append(m); out += gaps[i]
        self.gap_hist = [len(x) for x in gaps]
        if 'novm' in EXP: out = [o for o in out if not o.startswith('buffer_load')]
        return out

    def loop_consts(self):
        return [
            f's_cmp_eq_u32 s{sQ}, 0',
            f's_cselect_b32 s{sT}, s{P_W1}, s{P_W2}',
            f's_cselect_b32 s{sT+1}, s{P_W1+1}, s{P_W2+1}',
            f's_sub_u32 s{S_W}, s{sT}, 8192',
            f's_subb_u32 s{S_W+1}, s{sT+1}, 0',
            f's_cmp_lt_u32 s{sQ}, 3',
            f's_cselect_b32 s{sRECA}, {self.WREC}, 0',
            f's_bitcmp0_b32 s{sQ}, 0',
            f's_cselect_b32 s{sRECB}, {self.WREC}, 0',
            f's_cselect_b32 s{sAREC1}, {1<<20}, 0',
            f's_cselect_b32 s{sT}, 4608, 0',
            f's_add_u32 s{sSOFW}, s{sW0}, s{sT}',
        ]

    def verify_body(self, body):
        import re
        if EXP & {'novm'}: return
        val = {}
        nm = 0; nraw = 0; nact = 0
        for rep in range(3):
            for o in body:
                if o == '@BAR': continue
                ins = Ins(o)
                if ins.mn.startswith('ds_read'):
                    unit = nraw // 9 + 1; j = nraw % 9; nraw += 1
                    for i, r in enumerate(sorted(ins.wr)): val[r] = ('raw', unit, 4*j + i)
                elif ins.mn == 'v_perm_b32':
                    d = int(ins.ops[0][1:]); b_ = val.get(('v', int(ins.ops[1][1:]))); a_ = val.get(('v', int(ins.ops[2][1:])))
                    t, m = divmod(d - vF, 4)
                    if a_ and b_:
                        assert a_[1] == b_[1] and a_[2] == (18*m+t)//2 and b_[2] == (18*m+9+t)//2
                        val[('v', d)] = ('F', a_[1], t)
                    else: val[('v', d)] = None
                elif ins.kind == 'vmem' and not ins.lds_dma:
                    ss = nact // 12 + 1; j, e = divmod(nact % 12, 2); nact += 1
                    for r in ins.wr: val[r] = ('R', ss, j, e)
                elif ins.mn.startswith('v_mov_b32_dpp'):
                    d = int(ins.ops[0][1:]); src = val.get(('v', int(ins.ops[1].split()[0][1:])))
                    val[('v', d)] = ('S',) + src[1:] if src else None
                elif ins.kind == 'mfma':
                    step = nm // 72; k = nm % 72; nm += 1
                    kx = (1, 0, 2)[k // 24]; ky = (k % 24) // 8
                    fa = {val.get(r) for r in regs_of(ins.ops[1])}; xb = {val.get(r) for r in regs_of(ins.ops[2])}
                    if rep >= 1:
                        assert fa == {('F', step, 3*ky+kx)}, (o, fa, step)
                        assert len(xb) == 1 and list(xb)[0][1] == step // 2, (o, xb, step)
    def conv_loop(self, aflags=''):
        a = self.a
        body = self.body_stream(aflags)
        waits = {}
        issued = []
        grp = -1
        step = 0
        for rep in range(3):
            w_rep = {}
            for pos, o in enumerate(body):
                need_idx = -1
                if o == '@BAR':
                    want = step + 1 - 4
                    for k, (tag, regs) in enumerate(issued):
                        if tag == ('dma', want): need_idx = k
                    step += 1
                else:
                    ins = Ins(o)
                    touched = ins.rd | ins.wr
                    if ins.kind != 'vmem':
                        for k, (tag, regs) in enumerate(issued):
                            if regs & touched: need_idx = k
                if need_idx >= 0:
                    w_rep[pos] = len(issued) - 1 - need_idx
                    issued = issued[need_idx + 1:]
                if o != '@BAR':
                    ins = Ins(o)
                    if ins.kind == 'vmem':
                        if ins.lds_dma:
                            if f'v{vDMA[0]},' in o: grp += 1
                            issued.append((('dma', grp), set()))
                        else:
                            issued.append((('ld', 0), set(ins.wr)))
            waits[rep] = w_rep
        assert waits[1] == waits[2], 'not periodic'
        W = waits[2]
        self.verify_body(body)
        L = self.lbl('conv')
        a.label(L)
        for o in self.loop_consts(): a(o)
        for pos, o in enumerate(body):
            if pos in W and 'nowait' not in EXP:
                assert W[pos] < 64
                a(f's_waitcnt vmcnt({W[pos]})')
            a('s_barrier' if o == '@BAR' else o)
        a(f's_add_u32 s{sQ}, s{sQ}, 1')
        a(f's_bitcmp1_b32 s{sQ}, 0')
        a(f's_cbranch_scc1 {L}')
        a.check_backedge(L)

    def first_frags(self):
        a = self.a
        for o in self.raw_reads(0): a(o)
        a('s_waitcnt lgkmcnt(0)')
        for o in self.perms(1) + self.perms(0): a(o)
    def zero_acc(self):
        for i in range(64): self.a(f'v_accvgpr_write_b32 a{i}, 0')
    def first_acts(self, aflags=''):
        a = self.a
        a(f's_mov_b32 s{sSOFA}, 0\n s_mov_b32 s{S_A+2}, {1<<20}')
        for j in range(6):
            for e in range(2):
                a(self.act_op(vR[0], j, e, aflags))
        a(f's_mov_b32 s{sSOFA}, 262144')

    def reduce_addr(self, scratch):
        a = self.a
        t = vT
        REC, SRC = 2112, 16896
        a(f'''
        v_and_b32 v{t}, 15, v{vLANE}
        v_lshrrev_b32 v{t+1}, 4, v{vLANE}
        v_and_b32 v{t+2}, 7, v{t}
        v_xor_b32 v{t+3}, v{t+2}, v{t+1}
        s_mul_i32 s{sT}, s{sWAVE}, {SRC}
        s_add_u32 s{sT}, s{sT}, {scratch}
        v_lshlrev_b32 v{t+6}, 7, v{t}
        v_add_u32 v{t+7}, s{sT}, v{t+6}
        v_lshl_add_u32 v{t+4}, v{t+3}, 4, v{t+7}
        v_xor_b32 v{t+3}, 4, v{t+3}
        v_lshl_add_u32 v{t+5}, v{t+3}, 4, v{t+7}
        v_mul_u32_u24 v{t+1}, {2*REC}, v{t+1}
        v_add_u32 v{t+1}, v{t+1}, v{t+6}
        v_add_u32 v{t+1}, {scratch}, v{t+1}
        s_lshl_b32 s{sT}, s{sWAVE}, 1
        v_xor_b32 v{t+2}, s{sT}, v{t+2}
        v_lshl_add_u32 v{t+8}, v{t+2}, 4, v{t+1}
        v_xor_b32 v{t+2}, 1, v{t+2}
        v_lshl_add_u32 v{t+9}, v{t+2}, 4, v{t+1}
        ''')
    def conv_reduce(self, scratch, vm=0):
        a = self.a
        t = vT
        REC, SRC = 2112, 16896
        self.reduce_addr(scratch)
        a(f's_waitcnt vmcnt({vm}) lgkmcnt(0)')
        a('s_barrier')
        for ob in range(2):
            for i in range(4):
                for e in range(2):
                    acc = 32*ob + 8*i + 4*e
                    a(f'ds_write_b128 v{t+4+ob}, a[{acc}:{acc+3}] offset:{(2*i+e)*REC}')
        a('s_waitcnt lgkmcnt(0)')
        a('s_barrier')
        RB = TMP
        for src in range(4):
            for e in range(2):
                for hh in range(2):
                    a(f'ds_read_b128 {r4(RB + 16*src + 4*(2*e+hh))}, v{t+8+hh} offset:{src*SRC + e*REC}')
        for src in range(1, 4):
            a(f's_waitcnt lgkmcnt({12 - 4*src})')
            for e in range(2):
                for hh in range(2):
                    for tt in range(4):
                        c = 4 * hh + tt
                        acc = RB + 4*(2*e+hh) + tt
                        dst = vVAL + 2*c + e if src == 3 else acc
                        a(f'v_add_f32 v{dst}, v{acc}, v{RB + 16*src + 4*(2*e+hh) + tt}')
    def out_store(self):
        a = self.a
        so = self.xsoffs()
        for c in range(8):
            a(f'''
            v_lshlrev_b32 v{TMP+2*c}, 16, v{vXPK+c}
            v_and_b32 v{TMP+2*c+1}, 0xffff0000, v{vXPK+c}
            v_add_f32 v{TMP+2*c}, v{TMP+2*c}, v{vVAL+2*c}
            v_add_f32 v{TMP+2*c+1}, v{TMP+2*c+1}, v{vVAL+2*c+1}
            v_cvt_pk_bf16_f32 v{TMP+16+c}, v{TMP+2*c}, v{TMP+2*c+1}
            buffer_store_dword v{TMP+16+c}, v{vXA}, s[{S_OUT}:{S_OUT+3}], {so[c//2]} offen offset:{(c%2)*2048}
            ''')
    def begin_kernel(self, name):
        self.a.raw(f'.globl {name}\n.p2align 8\n.type {name},@function\n{name}:')
    def end_kernel(self, exit_label):
        self.a.label(exit_label)
        self.a('s_endpgm')

def kd(name, vgpr, agpr, sgpr=102):
    acc = (vgpr + 3) // 4 * 4
    return f""".p2align 6
.amdhsa_kernel {name}
  .amdhsa_next_free_vgpr {acc + agpr}
  .amdhsa_next_free_sgpr {sgpr}
  .amdhsa_accum_offset {acc}
  .amdhsa_group_segment_fixed_size 0
  .amdhsa_kernarg_size 96
  .amdhsa_user_sgpr_count 2
  .amdhsa_user_sgpr_kernarg_segment_ptr 1
  .amdhsa_system_sgpr_workgroup_id_x 1
.end_amdhsa_kernel
"""

def h_addr(g):
    g.a(f'''
    s_lshl_b32 s{sT+5}, s2, 14
    s_add_u32 s{sT+5}, s{sT+5}, {WS_H}
    v_lshlrev_b32 v{vT+14}, 6, v0
    ''')

def conv_standalone(g, layer):
    a = g.a
    g.conv_addr_dma()
    for o in g.w_srd(P_W1 if layer == 0 else P_W2): a(o)
    a(f's_mov_b32 s{S_W+2}, {g.WREC}')
    for u in range(4): g.dma_unit(u, sW0, g.UOFF[u])
    if layer == 0:
        a(f's_mov_b32 s{P_W2}, s{P_W1}\n s_mov_b32 s{P_W2+1}, s{P_W1+1}')
    a(f's_mov_b32 s{sQ}, 2')
    a(f's_lshl_b32 s{sT+4}, s{sB}, 20')
    g.srd(S_A, P_WS, 1 << 20, add_sgpr=sT + 4, add_imm=layer << 21)
    g.conv_addr_act(); g.first_acts()
    g.conv_addr_rd(); g.zero_acc()
    a('s_waitcnt vmcnt(0)'); a('s_barrier')
    g.first_frags()
    g.stamp(2); g.stamp(8, True)
    g.conv_loop()
    g.stamp(3); g.stamp(9, True)

def gen_baseline():
    g = Gen(); a = g.a
    names = ['ka_kernel', 'kb_kernel', 'kc_kernel', 'kd_kernel', 'ke_kernel']
    lds = [0, 0, LDS_BYTES, 0, LDS_BYTES]
    hdr = ''.join(f'; @launch kernel={n} grid=(256,1,1) block=(256,1,1) lds={l}\n' for n, l in zip(names, lds))
    hdr += '.amdgcn_target "amdgcn-amd-amdhsa--gfx950"\n.text\n'
    def begin(ch):
        g.begin_kernel(f'k{ch}_kernel'); g.stamp(0); g.setup(f'L_exit_{ch}'); a('s_waitcnt lgkmcnt(0)'); g.stamp(1)
    def end(ch, k):
        if STAMPS: a('s_waitcnt vmcnt(0)')
        g.stamp(7); g.stamp_flush(k); g.end_kernel(f'L_exit_{ch}')
    begin('a')
    g.srd(S_X, P_X, 2 << 20); g.srd(S_WS, P_WS, WS_SIZE)
    g.xtile_addr(); g.xtile_load()
    g.emb_load()
    a('s_waitcnt vmcnt(7)')
    g.xtile_unpack(); g.wave_stats(); g.stats_publish(0)
    a('s_waitcnt vmcnt(1)')
    g.emb_compute_publish()
    end('a', 0)
    begin('b')
    g.srd(S_X, P_X, 2 << 20); g.srd(S_WS, P_WS, WS_SIZE)
    g.xtile_addr(); g.xtile_load()
    g.stat_base(sT + 8, 0); a(f'v_lshlrev_b32 v{vT+15}, 4, v{vLANE}'); g.stats_load_issue()
    g.load_gb(P_G1, P_B1); g.unpack_gb()
    a('s_waitcnt vmcnt(0)')
    g.xtile_unpack(); g.stats_combine(); g.norm_silu_pack(); g.a_store(0)
    end('b', 1)
    begin('c')
    g.srd(S_WS, P_WS, WS_SIZE)
    conv_standalone(g, 0)
    a('s_waitcnt vmcnt(0)')
    g.emb_gather_addr(TMP + 64); g.emb_gather_issue(TMP + 64)
    g.conv_reduce(2 * SLOT, vm=2); g.stamp(4)
    a('s_waitcnt vmcnt(0)')
    g.emb_gather_reduce(TMP + 64)
    for c in range(8):
        a(f'v_add_f32 v{vVAL+2*c}, s{sEMB+c}, v{vVAL+2*c}\n v_add_f32 v{vVAL+2*c+1}, s{sEMB+c}, v{vVAL+2*c+1}')
    g.wave_stats(); g.stats_publish(1)
    h_addr(g)
    for i in range(4):
        a(f'buffer_store_dwordx4 {r4(vVAL+4*i)}, v{vT+14}, s[{S_WS}:{S_WS+3}], s{sT+5} offen offset:{16*i}')
    end('c', 2)
    begin('d')
    g.srd(S_WS, P_WS, WS_SIZE)
    h_addr(g)
    for i in range(4):
        a(f'buffer_load_dwordx4 {r4(vVAL+4*i)}, v{vT+14}, s[{S_WS}:{S_WS+3}], s{sT+5} offen offset:{16*i}')
    g.stat_base(sT + 8, 1); a(f'v_lshlrev_b32 v{vT+15}, 4, v{vLANE}'); g.stats_load_issue()
    g.load_gb(P_G2, P_B2); g.unpack_gb()
    a('s_waitcnt vmcnt(0)')
    g.stats_combine(); g.norm_silu_pack(); g.a_store(1)
    end('d', 3)
    begin('e')
    g.srd(S_X, P_X, 2 << 20); g.srd(S_OUT, P_OUT, 2 << 20)
    conv_standalone(g, 1)
    g.xtile_addr(); g.xtile_load()
    g.conv_reduce(2 * SLOT, vm=8); g.stamp(4)
    a('s_waitcnt vmcnt(0)')
    g.out_store()
    end('e', 4)
    txt = hdr + a.text() + '.section .rodata,"a"\n'
    for n in names:
        txt += kd(n, NVGPR, 64)
    return txt

COMM = DUMMY + 8192

def gen_fused():
    g = Gen(); a = g.a
    name = 'standalone__adm_resblock__diffusion_kernel'
    hdr = f'; @launch grid=(256,1,1) block=(256,1,1) lds={LDS_BYTES}\n'
    hdr += '.amdgcn_target "amdgcn-amd-amdhsa--gfx950"\n.text\n'
    SC = 'sc1'
    t = vT
    SLP = 's_sleep 1' if 'nosleep' not in EXP else ''
    g.begin_kernel(name); g.stamp(0); g.setup('L_exit')
    ncode = 0
    if 'nocodepf' not in EXP:
        a(f's_getpc_b64 s[{S_OUT}:{S_OUT+1}]')
        a.label('L_pc')
        a(f'''
        s_sub_u32 s{S_OUT}, s{S_OUT}, L_pc-{name}
        s_subb_u32 s{S_OUT+1}, s{S_OUT+1}, 0
        s_mov_b32 s{S_OUT+2}, L_code_end-{name}
        s_mov_b32 s{S_OUT+3}, 0x00020000
        v_lshlrev_b32 v{t+14}, 4, v0
        s_mov_b32 m0, {DUMMY}
        s_movk_i32 s{sT+1}, 4096
        s_movk_i32 s{sT+2}, 8192
        s_movk_i32 s{sT+3}, 12288
        buffer_load_dwordx4 v{t+14}, s[{S_OUT}:{S_OUT+3}], 0 offen lds
        buffer_load_dwordx4 v{t+14}, s[{S_OUT}:{S_OUT+3}], s{sT+1} offen lds
        buffer_load_dwordx4 v{t+14}, s[{S_OUT}:{S_OUT+3}], s{sT+2} offen lds
        buffer_load_dwordx4 v{t+14}, s[{S_OUT}:{S_OUT+3}], s{sT+3} offen lds
        ''')
        ncode = 4
    g.xtile_addr()
    g.conv_addr_dma()
    a('s_waitcnt lgkmcnt(0)')
    g.stamp(1)
    if 'dbg' in EXP:
        a(f's_mov_b32 s{P_T}, s{P_T}')
    g.srd(S_X, P_X, 2 << 20)
    g.xtile_load()
    a(f'''
    s_lshl_b32 s{sT}, s{sB}, 8
    s_add_u32 s{sT}, s{sT}, {WS_EPOCH}
    s_add_u32 s{sT+1}, s{P_WS}, s{sT}
    s_addc_u32 s{sT+2}, s{P_WS+1}, 0
    s_load_dword s{sTAG}, s[{sT+1}:{sT+2}], 0
    ''')
    g.srd(S_WS, P_WS, WS_SIZE)
    if 'dbg' in EXP:
        a(f's_mov_b32 s{P_X}, s{P_DBG}\n s_mov_b32 s{P_X+1}, s{P_DBG+1}')
    ntlb = 0
    if 'tlb' in EXP:
        a(f'''
        v_lshlrev_b32 v{t}, 20, v{vLANE}
        s_mov_b64 exec, 0x3ff
        buffer_load_dword v{TMP+50}, v{t}, s[{S_WS}:{S_WS+3}], 0 offen
        s_mov_b64 exec, -1
        ''')
        ntlb = 1
    g.emb_load()
    def warm(ptr, k0, k1):
        for o in g.w_srd(ptr): a(o)
        a(f'''
        s_mov_b32 s{S_W+2}, {g.WREC}
        s_lshl_b32 s{sT}, s{sPXT}, 2
        s_add_u32 s{sT}, s{sT}, s{sWAVE}
        s_add_u32 s{sT}, s{sT}, s{sOC0}
        s_mul_i32 s{sT}, s{sT}, 9216
        s_add_u32 s{sT}, s{sT}, {8192 + k0}
        v_lshlrev_b32 v{t+14}, 4, v{vLANE}
        s_mov_b32 m0, {DUMMY}
        ''')
        n = (k1 - k0 + 1023) // 1024
        for k in range(n):
            if k and k % 4 == 0: a(f's_add_u32 s{sT}, s{sT}, 4096')
            a(f'buffer_load_dwordx4 v{t+14}, s[{S_W}:{S_W+3}], s{sT} offen offset:{1024*(k%4)} lds')
        return n
    nw = warm(P_W1, 0, 9216)
    g.load_gb(P_G1, P_B1)
    g.conv_addr_rd(); g.conv_addr_act(); g.zero_acc()
    a(f's_mov_b32 s{sLAYER}, 0\n s_mov_b32 s{sQ}, 0')
    g.unpack_gb()
    a(f's_add_u32 s{sTAG}, s{sTAG}, 1')
    a(f's_waitcnt vmcnt({ntlb + 7 + nw})')
    g.stamp(2)
    g.xtile_unpack()

    def bulk_units(u0):
        Ls = g.lbl('bulk')
        a(f's_mov_b32 s{S_W+2}, {g.WREC}')
        for u in (u0, u0 + 1): g.dma_unit(u, sW0, g.UOFF[u])
        a(f's_cmp_lg_u32 s{sWAVE}, 2\n s_cbranch_scc1 {Ls}')
        a(f's_sub_u32 s{sT+5}, s{sW0}, 1152\n s_sub_u32 s{sWOFF}, s{sWOFF}, 18432')
        for u in (u0, u0 + 1): g.dma_unit(u, sT + 5, g.UOFF[u])
        a(f's_add_u32 s{sWOFF}, s{sWOFF}, 18432')
        a.label(Ls)

    a.label('L_layer')
    g.wave_stats()
    a(f'''
    v_mov_b32 v{t+5}, v{t+6}
    s_lshl_b32 s{sT}, s{sWAVE}, 3
    s_add_u32 s{sT}, s{sT}, {COMM}
    v_mov_b32 v{t}, s{sT}
    ds_write_b64 v{t}, v[{t+4}:{t+5}]
    v_and_b32 v{t+1}, 3, v{vLANE}
    v_lshlrev_b32 v{t+1}, 3, v{t+1}
    v_add_u32 v{t+1}, {COMM}, v{t+1}
    v_and_b32 v{t+15}, 31, v{vLANE}
    v_lshlrev_b32 v{t+14}, 7, v{t+15}
    v_lshlrev_b32 v{t+15}, 4, v{t+15}
    s_waitcnt lgkmcnt(0)
    s_barrier
    s_cmp_lg_u32 s{sWAVE}, 0
    s_cbranch_scc1 L_st_nopub
    ds_read_b64 v[{t+4}:{t+5}], v{t+1}
    ''')
    g.stat_base(sT + 8, None)
    a(f'''
    s_lshr_b32 s{sT+1}, s2, 3
    s_lshl_b32 s{sT+1}, s{sT+1}, 4
    s_add_u32 s{sT+2}, s{sT+8}, s{sT+1}
    s_sub_u32 s1, s{sT+8}, {WS_STAT}
    s_lshl_b32 s1, s1, 1
    s_add_u32 s1, s1, {WS_STATB}
    s_lshl_b32 s{sT+1}, s{sT+1}, 3
    s_add_u32 s{sT+3}, s1, s{sT+1}
    s_waitcnt lgkmcnt(0)
    v_readfirstlane_b32 s{sT}, v{t+4}
    v_subrev_f32 v{t}, s{sT}, v{t+4}
    v_mul_f32 v{t+1}, v{t}, v{t}
    v_add_f32_dpp v{t}, v{t}, v{t} quad_perm:[1,0,3,2] row_mask:0xf bank_mask:0xf
    v_add_f32_dpp v{t+5}, v{t+5}, v{t+5} quad_perm:[1,0,3,2] row_mask:0xf bank_mask:0xf
    v_add_f32_dpp v{t+1}, v{t+1}, v{t+1} quad_perm:[1,0,3,2] row_mask:0xf bank_mask:0xf
    v_add_f32_dpp v{t}, v{t}, v{t} quad_perm:[2,3,0,1] row_mask:0xf bank_mask:0xf
    v_add_f32_dpp v{t+5}, v{t+5}, v{t+5} quad_perm:[2,3,0,1] row_mask:0xf bank_mask:0xf
    v_add_f32_dpp v{t+1}, v{t+1}, v{t+1} quad_perm:[2,3,0,1] row_mask:0xf bank_mask:0xf
    v_mul_f32 v{t+2}, 0x3e800000, v{t}
    v_add_f32 v{t+4}, s{sT}, v{t+2}
    v_fma_f32 v{t+1}, -v{t}, v{t+2}, v{t+1}
    v_fmac_f32 v{t+5}, 0x44800000, v{t+1}
    v_mov_b32 v{t+6}, v{t+5}
    v_mov_b32 v{t+5}, s{sTAG}
    v_mov_b32 v{t+7}, s{sTAG}
    v_mov_b32 v{t}, 0
    s_mov_b64 exec, 1
    ''')
    a(f'''
    buffer_store_dwordx4 v[{t+4}:{t+7}], v{t}, s[{S_WS}:{S_WS+3}], s{sT+2} offen
    buffer_store_dwordx4 v[{t+4}:{t+7}], v{t}, s[{S_WS}:{S_WS+3}], s{sT+3} offen {SC}
    s_mov_b64 exec, -1
    ''')
    a.label('L_st_nopub')
    g.stamp_l(3)
    a(f's_cmp_lg_u32 s{sLAYER}, 0\n s_cbranch_scc1 L_noemb')
    a(f's_waitcnt vmcnt({nw})')
    g.emb_compute_publish(SC)
    a.label('L_noemb')
    a(f's_cmp_lg_u32 s{sWAVE}, 0\n s_cbranch_scc1 L_st_other')
    a(f's_mov_b32 s{sT+6}, 0')
    a.label('L_pstat')
    a(f'''
    buffer_load_dwordx4 v[{t+8}:{t+11}], v{t+15}, s[{S_WS}:{S_WS+3}], s{sT+8} offen {SC}
    buffer_load_dwordx4 v[{t+4}:{t+7}], v{t+14}, s[{S_WS}:{S_WS+3}], s1 offen {SC}
    s_waitcnt vmcnt(1)
    v_cmp_ne_u32 vcc, s{sTAG}, v{t+9}
    v_cmp_ne_u32_e64 s[52:53], s{sTAG}, v{t+11}
    s_or_b64 vcc, vcc, s[52:53]
    s_cmp_eq_u64 vcc, 0
    s_cbranch_scc1 L_pstat_done
    s_add_u32 s{sT+6}, s{sT+6}, 1
    s_waitcnt vmcnt(0)
    v_mov_b32 v{t+8}, v{t+4}
    v_mov_b32 v{t+10}, v{t+6}
    v_cmp_ne_u32 vcc, s{sTAG}, v{t+5}
    v_cmp_ne_u32_e64 s[52:53], s{sTAG}, v{t+7}
    s_or_b64 vcc, vcc, s[52:53]
    s_cmp_eq_u64 vcc, 0
    s_cbranch_scc1 L_pstat_done
    s_cmp_lt_u32 s{sT+6}, 0x40000
    s_cbranch_scc1 L_pstat
    ''')
    a.label('L_pstat_done')
    g.stamp_l(4)
    a(f'''
    v_readfirstlane_b32 s{sT}, v{t+8}
    v_subrev_f32 v{t}, s{sT}, v{t+8}
    v_mul_f32 v{t+1}, v{t}, v{t}
    ''')
    g.wave_reduce([t, t+1, t+10], full=False)
    a(f'''
    v_readlane_b32 s{sT+1}, v{t}, 31
    v_readlane_b32 s{sT+2}, v{t+1}, 31
    v_readlane_b32 s{sT+3}, v{t+10}, 31
    v_mov_b32 v{t+8}, 0x3d000000
    v_mul_f32 v{t+8}, s{sT+1}, v{t+8}
    v_add_f32 v{t}, s{sT}, v{t+8}
    v_mul_f32 v{t+9}, s{sT+1}, v{t+8}
    v_sub_f32 v{t+9}, s{sT+2}, v{t+9}
    v_mov_b32 v{t+10}, s{sT+3}
    v_fmac_f32 v{t+10}, 0x45800000, v{t+9}
    v_mov_b32 v{t+11}, 0x3727c5ac
    v_fmac_f32 v{t+11}, 0x37000000, v{t+10}
    v_rsq_f32 v{t+1}, v{t+11}
    v_mov_b32 v{t+2}, {COMM + 64}
    ds_write_b64 v{t+2}, v[{t}:{t+1}]
    s_waitcnt lgkmcnt(0)
    s_branch L_st_join
    ''')
    a.label('L_st_other')
    a(f's_cmp_lg_u32 s{sLAYER}, 0\n s_cbranch_scc1 L_st_o1')
    bulk_units(0)
    a('s_branch L_st_join')
    a.label('L_st_o1')
    bulk_units(2)
    a.label('L_st_join')
    a(f'''
    v_mov_b32 v{t+2}, {COMM + 64}
    s_barrier
    ds_read_b64 v[{t}:{t+1}], v{t+2}
    s_waitcnt lgkmcnt(0)
    ''')
    g.norm_silu_pack(); g.a_store(None, SC)
    a(f'''
    s_lshl_b32 s{sT+8}, s{sLAYER}, 1
    s_add_u32 s{sT+8}, s{sT+8}, s{sB}
    s_lshl_b32 s{sT+8}, s{sT+8}, 16
    s_add_u32 s{sT+8}, s{sT+8}, {WS_FLAG}
    s_lshl_b32 s{sT+1}, s{sPXT}, 11
    s_lshl_b32 s{sT}, s{sOC0}, 2
    s_add_u32 s{sT}, s{sT}, s{sT+1}
    s_add_u32 s{sT+7}, s{sT}, s{sT+8}
    s_lshl_b32 s{sT}, s{sG}, 14
    s_add_u32 s0, s{sT+8}, s{sT}
    v_lshlrev_b32 v{t}, 14, v{vLANE}
    v_mov_b32 v{t+1}, s{sTAG}
    v_lshrrev_b32 v{t+12}, 4, v{vLANE}
    v_cmp_eq_u32 vcc, 3, v{t+12}
    v_cndmask_b32 v{t+12}, v{t+12}, 1, vcc
    s_sub_u32 s{sT}, s{sPXT}, 1
    v_add_u32 v{t+12}, s{sT}, v{t+12}
    v_med3_i32 v{t+12}, v{t+12}, 0, 7
    v_and_b32 v{t+13}, 15, v{vLANE}
    v_lshlrev_b32 v{t+13}, 7, v{t+13}
    v_lshl_add_u32 v{t+12}, v{t+12}, 11, v{t+13}
    s_lshl_b32 s{sT+4}, s{sB}, 20
    s_lshl_b32 s{sT+5}, s{sLAYER}, 21
    s_add_u32 s{sT+4}, s{sT+4}, s{sT+5}
    ''')
    g.srd(S_A, P_WS, 1 << 20, add_sgpr=sT + 4)
    a('s_waitcnt vmcnt(0)')
    a('s_barrier')
    g.stamp_l(5)
    a(f'''
    s_cmp_lg_u32 s{sWAVE}, 0
    s_cbranch_scc1 L_fl_nostore
    s_mov_b64 exec, 15
    buffer_store_dword v{t+1}, v{t}, s[{S_WS}:{S_WS+3}], s{sT+7} offen {SC}
    s_mov_b64 exec, -1
    ''')
    a.label('L_fl_nostore')
    a(f's_cmp_lg_u32 s{sLAYER}, 0\n s_cbranch_scc1 L_skip0')
    g.emb_gather_addr(TMP + 64)
    g.emb_gather_issue(TMP + 64, SC)
    g.first_frags()
    g.poll4(lambda: None, [TMP + 65, TMP + 67, TMP + 69, TMP + 71], 'pemb', SLP, retry=lambda: g.emb_gather_issue(TMP + 64, SC))
    g.emb_gather_reduce(TMP + 64)
    a(f's_cmp_eq_u32 s{sWAVE}, 0\n s_cbranch_scc1 L_skip0')
    bulk_units(2)
    a.label('L_skip0')
    a(f's_cmp_lg_u32 s{sWAVE}, 0\n s_cbranch_scc1 L_fl_join')
    g.poll4(lambda: a(f'buffer_load_dword v{t+13}, v{t+12}, s[{S_WS}:{S_WS+3}], s0 offen {SC}'), [t + 13], 'pflag', SLP)
    a.label('L_fl_join')
    a('s_barrier')
    g.stamp_l(6)
    AF = SC if 'actplain' not in EXP else ''
    g.first_acts(AF)
    a(f's_cmp_lg_u32 s{sLAYER}, 0\n s_cbranch_scc1 L_skip1')
    warm(P_W2, 0, 9216)
    a('s_waitcnt vmcnt(9)')
    a('s_branch L_go')
    a.label('L_skip1')
    a('s_waitcnt vmcnt(0)')
    a.label('L_go')
    g.stamp_l(7)
    g.conv_loop(AF)
    g.stamp_l(8)
    g.conv_reduce(2 * SLOT, vm=0)
    g.stamp_l(9)
    a(f's_cmp_lg_u32 s{sLAYER}, 0\n s_cbranch_scc1 L_final')
    g.load_gb(P_G2, P_B2)
    for c in range(8):
        a(f'v_add_f32 v{vVAL+2*c}, s{sEMB+c}, v{vVAL+2*c}\n v_add_f32 v{vVAL+2*c+1}, s{sEMB+c}, v{vVAL+2*c+1}')
    a(f's_mov_b32 s{sLAYER}, 1')
    g.zero_acc()
    g.unpack_gb()
    a('s_branch L_layer')
    a.label('L_final')
    g.srd(S_OUT, P_OUT, 2 << 20)
    g.out_store()
    a(f'''
    s_lshr_b32 s{sT}, s2, 3
    s_or_b32 s{sT}, s{sT}, s{sG}
    s_or_b32 s{sT}, s{sT}, s{sWAVE}
    s_cmp_lg_u32 s{sT}, 0
    s_cbranch_scc1 L_noep
    s_lshl_b32 s{sT}, s{sB}, 8
    s_add_u32 s{sT}, s{sT}, {WS_EPOCH}
    v_mov_b32 v{t}, 0
    v_mov_b32 v{t+1}, s{sTAG}
    s_mov_b64 exec, 1
    buffer_store_dword v{t+1}, v{t}, s[{S_WS}:{S_WS+3}], s{sT} offen
    s_mov_b64 exec, -1
    ''')
    a.label('L_noep')
    if STAMPS: a('s_waitcnt vmcnt(0)')
    g.stamp(15); g.stamp_flush(0)
    g.end_kernel('L_exit')
    a.label('L_code_end')
    txt = hdr + a.text() + '.section .rodata,"a"\n' + kd(name, NVGPR, 64)
    return txt

if __name__ == '__main__':
    if '--stamps' in sys.argv:
        STAMPS = True; sys.argv.remove('--stamps')
    for x in list(sys.argv):
        if x.startswith('--exp='):
            EXP = set(x[6:].split(',')); sys.argv.remove(x)
    mode = sys.argv[1] if len(sys.argv) > 1 else 'baseline'
    out = sys.argv[2] if len(sys.argv) > 2 else 'standalone__adm_resblock__diffusion.s'
    txt = {'baseline': gen_baseline, 'fused': gen_fused}[mode]()
    open(out, 'w').write(txt)
    print('wrote', out, len(txt))
```

```python
import sys
from asmlib import Asm, Ins, regs_of

WS_A1   = 0
WS_A2   = 2 << 20
WS_H    = 4 << 20
WS_STAT = 8 << 20
WS_EMB  = (8 << 20) + (64 << 10)
WS_FLAG = (9 << 20)
WS_EPOCH = (8 << 20) + (576 << 10)
WS_STATB = (8 << 20) + (640 << 10)
WS_STAMP = 10 << 20
WS_SIZE = 16 << 20

SLOT = 36864
DUMMY = 4 * SLOT
LDS_BYTES = 163840

S_W, S_A, S_X, S_WS, S_OUT = 4, 8, 12, 16, 20
sWAVE, sB, sG, sOCT, sPXT, sOC0, sY0 = 3, 24, 25, 26, 27, 28, 29
sTAG, sLAYER = 30, 31
P_X, P_T, P_G1, P_B1, P_W1, P_WE, P_G2, P_B2, P_W2, P_OUT, P_DBG, P_WS = [32 + 2 * i for i in range(12)]
sSELE, sSELO = 56, 57
sQ, sSOFW, sSOFA, sWOFF, sRECB, sW0, sRECA, sAREC1, sITER = 58, 59, 60, 61, 62, 63, 64, 65, 66
sT = 67
sWOFF2 = 34
vCHK = 0
sGAM = 76
sBET = 84
sEMB = 92
sXO = 0

vLANE = 1
vDMA = [2, 16, 17, 18, 19, 20, 21, 22, 23]
vRD = 3
vRD2 = 24
vACT, vTOP, vBOT = 11, 12, 13
vSTAMP = 14
vXA = 15
vT = 232
vF = 32
vRAW = 68
vR = [104, 152]
vS = 200
vXPK = 248
TMP = 104
vVAL = 200
TMP2 = 216
NVGPR = 256
STAMPS = False
EXP = set()
DBGWG = 77
PSLEEP = 0
W1A = 9216
EARLYU = 1
L1WAIT = 0
BMASK = 7

def r4(b): return f'v[{b}:{b+3}]'

class Gen:
    def __init__(self):
        self.a = Asm()
        self.uid = 0
    def lbl(self, s):
        self.uid += 1
        return f'L_{s}_{self.uid}'
    def stamp(self, i, cyc=False):
        if not STAMPS: return
        if 'dbg' in EXP: i = {0: 16, 1: 17, 2: 0, 15: 1}[i]
        self.a(f'''
        {'s_memtime' if cyc else 's_memrealtime'} s[100:101]
        s_waitcnt lgkmcnt(0)
        v_writelane_b32 v{vSTAMP}, s100, {i}
        ''')
    def stamp_l(self, i):
        if not STAMPS: return
        self.a(f'''
        s_memrealtime s[100:101]
        s_mul_i32 m0, s{sLAYER}, {7 if 'dbg' in EXP else 16}
        s_add_u32 m0, m0, {i - 1 if 'dbg' in EXP else i}
        s_waitcnt lgkmcnt(0)
        s_nop 3
        v_writelane_b32 v{vSTAMP}, s100, m0
        ''')
    def stamp_flush(self, k):
        if not STAMPS: return
        if 'dbg' in EXP:
            L = self.lbl('dbgskip')
            self.a(f'''
            s_cmp_lg_u32 s2, {DBGWG}
            s_cbranch_scc1 {L}
            s_cmp_lg_u32 s{sWAVE}, 0
            s_cbranch_scc1 {L}
            v_readlane_b32 s100, v{vSTAMP}, 16
            s_mov_b32 s{S_WS}, s{P_X}
            s_mov_b32 s{S_WS+1}, s{P_X+1}
            s_mov_b32 s{S_WS+2}, 256
            v_lshlrev_b32 v{vT}, 2, v{vLANE}
            v_subrev_u32 v{vSTAMP}, s100, v{vSTAMP}
            buffer_store_dword v{vSTAMP}, v{vT}, s[{S_WS}:{S_WS+3}], 0 offen
            ''')
            self.a.label(L)
            return
        self.srd(S_WS, P_WS, WS_SIZE)
        self.a(f'''
        s_lshl_b32 s100, s2, 10
        s_add_u32 s100, s100, {WS_STAMP + k * (256 << 10)}
        s_lshl_b32 s101, s{sWAVE}, 8
        s_add_u32 s100, s100, s101
        v_lshlrev_b32 v{vT}, 2, v{vLANE}
        buffer_store_dword v{vSTAMP}, v{vT}, s[{S_WS}:{S_WS+3}], s100 offen
        ''')

    def setup(self, exit_label):
        self.a(f'''
        s_cmp_ge_u32 s2, 256
        s_cbranch_scc1 {exit_label}
        s_load_dwordx16 s[32:47], s[0:1], 0
        s_load_dwordx8 s[48:55], s[0:1], 64
        v_lshrrev_b32 v{vT}, 6, v0
        v_and_b32 v{vLANE}, 63, v0
        v_readfirstlane_b32 s{sWAVE}, v{vT}
        s_and_b32 s{sT}, s2, 7
        s_lshr_b32 s{sT+1}, s2, 3
        s_lshr_b32 s{sB}, s{sT}, 2
        s_and_b32 s{sG}, s{sT}, 3
        s_and_b32 s{sOCT}, s{sT+1}, 3
        s_lshr_b32 s{sPXT}, s{sT+1}, 2
        s_lshl_b32 s{sOC0}, s{sG}, 7
        s_lshl_b32 s{sT+2}, s{sOCT}, 5
        s_add_u32 s{sOC0}, s{sOC0}, s{sT+2}
        s_lshl_b32 s{sY0}, s{sPXT}, 2
        s_mov_b32 s{sSELE}, 0x07060100
        s_mov_b32 s{sSELO}, 0x05040302
        s_mov_b32 s{sTAG}, 1
        ''')
    def srd(self, d, ptr, size, add_sgpr=None, add_imm=0):
        a = self.a
        if add_sgpr is None and add_imm == 0:
            a(f's_mov_b32 s{d}, s{ptr}\n s_mov_b32 s{d+1}, s{ptr+1}')
        else:
            if add_sgpr is not None:
                a(f's_add_u32 s{d}, s{ptr}, s{add_sgpr}\n s_addc_u32 s{d+1}, s{ptr+1}, 0')
                if add_imm:
                    a(f's_add_u32 s{d}, s{d}, {add_imm}\n s_addc_u32 s{d+1}, s{d+1}, 0')
            else:
                a(f's_add_u32 s{d}, s{ptr}, {add_imm}\n s_addc_u32 s{d+1}, s{ptr+1}, 0')
        a(f's_mov_b32 s{d+2}, {size}\n s_mov_b32 s{d+3}, 0x00020000')

    def xtile_addr(self):
        self.a(f'''
        s_lshl_b32 s{sT}, s{sB}, 20
        s_lshl_b32 s{sT+1}, s{sWAVE}, 3
        s_add_u32 s{sT+1}, s{sT+1}, s{sOC0}
        s_lshl_b32 s{sT+1}, s{sT+1}, 11
        s_add_u32 s{sT}, s{sT}, s{sT+1}
        s_lshl_b32 s{sT+1}, s{sY0}, 6
        s_add_u32 s{sT}, s{sT}, s{sT+1}
        v_lshlrev_b32 v{vXA}, 2, v{vLANE}
        v_add_u32 v{vXA}, s{sT}, v{vXA}
        ''')
    def xsoffs(self):
        self.a(f's_movk_i32 s{sT+1}, 4096\n s_movk_i32 s{sT+2}, 8192\n s_movk_i32 s{sT+3}, 12288')
        return ['0', f's{sT+1}', f's{sT+2}', f's{sT+3}']
    def xtile_load(self):
        so = self.xsoffs()
        for c in range(8):
            self.a(f'buffer_load_dword v{vXPK+c}, v{vXA}, s[{S_X}:{S_X+3}], {so[c//2]} offen offset:{(c%2)*2048}')
    def xtile_unpack(self):
        for c in range(8):
            self.a(f'v_lshlrev_b32 v{vVAL+2*c}, 16, v{vXPK+c}\n v_and_b32 v{vVAL+2*c+1}, 0xffff0000, v{vXPK+c}')

    def wave_reduce(self, regs, full=True):
        steps = ['row_shr:1 row_mask:0xf bank_mask:0xf bound_ctrl:0', 'row_shr:2 row_mask:0xf bank_mask:0xf bound_ctrl:0',
                 'row_shr:4 row_mask:0xf bank_mask:0xf bound_ctrl:0', 'row_shr:8 row_mask:0xf bank_mask:0xf bound_ctrl:0',
                 'row_bcast:15 row_mask:0xa bank_mask:0xf']
        if full: steps.append('row_bcast:31 row_mask:0xc bank_mask:0xf')
        for st in steps:
            for r in regs:
                self.a(f'v_add_f32_dpp v{r}, v{r}, v{r} {st}')

    def wave_stats(self):
        a = self.a
        t = vT
        a(f'v_readfirstlane_b32 s{sT}, v{vVAL}')
        D = TMP2
        for i in range(16):
            a(f'v_subrev_f32 v{D+i}, s{sT}, v{vVAL+i}')
        a(f'v_add_f32 v{t}, v{D}, v{D+1}\n v_mul_f32 v{t+1}, v{D}, v{D}\n v_mul_f32 v{t+3}, v{D+1}, v{D+1}\n v_add_f32 v{t+2}, v{D+2}, v{D+3}')
        for i in range(2, 16):
            a(f'v_fmac_f32 v{t+1+2*(i&1)}, v{D+i}, v{D+i}')
            if i >= 4: a(f'v_add_f32 v{t+2*(i&1)}, v{t+2*(i&1)}, v{D+i}')
        a(f'v_add_f32 v{t}, v{t}, v{t+2}\n v_add_f32 v{t+1}, v{t+1}, v{t+3}')
        self.wave_reduce([t, t+1])
        a(f'''
        v_readlane_b32 s{sT+1}, v{t}, 63
        v_readlane_b32 s{sT+2}, v{t+1}, 63
        v_mov_b32 v{t+5}, s{sTAG}
        v_mov_b32 v{t+7}, s{sTAG}
        v_mov_b32 v{t}, 0x3a800000
        v_mul_f32 v{t}, s{sT+1}, v{t}
        v_add_f32 v{t+4}, s{sT}, v{t}
        v_mul_f32 v{t+1}, s{sT+1}, v{t}
        v_sub_f32 v{t+6}, s{sT+2}, v{t+1}
        ''')
    def stat_base(self, dst, layer):
        a = self.a
        a(f's_and_b32 s{dst}, s2, 7\n s_lshl_b32 s{dst}, s{dst}, 11')
        if layer is None:
            a(f's_lshl_b32 s{sT+7}, s{sLAYER}, 14\n s_add_u32 s{dst}, s{dst}, s{sT+7}\n s_add_u32 s{dst}, s{dst}, {WS_STAT}')
        else:
            a(f's_add_u32 s{dst}, s{dst}, {WS_STAT + layer * 16384}')
    def stats_publish(self, layer, flags=''):
        a = self.a
        self.stat_base(sT + 8, layer)
        a(f'''
        s_lshr_b32 s{sT+1}, s2, 3
        s_lshl_b32 s{sT+1}, s{sT+1}, 2
        s_add_u32 s{sT+1}, s{sT+1}, s{sWAVE}
        s_lshl_b32 s{sT+1}, s{sT+1}, 4
        s_add_u32 s{sT}, s{sT+8}, s{sT+1}
        v_mov_b32 v{vT}, 0
        s_mov_b64 exec, 1
        buffer_store_dwordx4 v[{vT+4}:{vT+7}], v{vT}, s[{S_WS}:{S_WS+3}], s{sT} offen {flags}
        s_mov_b64 exec, -1
        v_lshlrev_b32 v{vT+15}, 4, v{vLANE}
        ''')
    def stats_load_issue(self, flags=''):
        self.a(f'''
        buffer_load_dwordx4 v[{vT+4}:{vT+7}], v{vT+15}, s[{S_WS}:{S_WS+3}], s{sT+8} offen {flags}
        buffer_load_dwordx4 v[{vT+8}:{vT+11}], v{vT+15}, s[{S_WS}:{S_WS+3}], s{sT+8} offen offset:1024 {flags}
        ''')
    def poll4(self, issue, regs, name, slp='', retry=None):
        a = self.a
        L = self.lbl(name); D = self.lbl(name + '_done')
        a(f's_mov_b32 s{sT+6}, 0')
        a.label(L)
        issue()
        a('s_waitcnt vmcnt(0)')
        a(f'v_cmp_ne_u32 vcc, s{sTAG}, v{regs[0]}')
        for r in regs[1:]:
            a(f'v_cmp_ne_u32_e64 s[52:53], s{sTAG}, v{r}')
            a('s_or_b64 vcc, vcc, s[52:53]')
        a(f's_cmp_eq_u64 vcc, 0\n s_cbranch_scc1 {D}')
        if slp: a(slp)
        if retry: retry()
        a(f'''
        s_add_u32 s{sT+6}, s{sT+6}, 1
        s_cmp_lt_u32 s{sT+6}, 0x40000
        s_cbranch_scc1 {L}
        ''')
        a.label(D)
    def stats_combine(self):
        a = self.a
        t = vT
        a(f'''
        v_readfirstlane_b32 s{sT}, v{t+4}
        v_add_f32 v{t+2}, v{t+6}, v{t+10}
        v_subrev_f32 v{t+4}, s{sT}, v{t+4}
        v_subrev_f32 v{t+8}, s{sT}, v{t+8}
        v_add_f32 v{t}, v{t+4}, v{t+8}
        v_mul_f32 v{t+1}, v{t+4}, v{t+4}
        v_fmac_f32 v{t+1}, v{t+8}, v{t+8}
        ''')
        self.wave_reduce([t, t+1, t+2])
        a(f'''
        v_readlane_b32 s{sT+1}, v{t}, 63
        v_readlane_b32 s{sT+2}, v{t+1}, 63
        v_readlane_b32 s{sT+3}, v{t+2}, 63
        v_mov_b32 v{t+4}, 0x3c000000
        v_mul_f32 v{t+4}, s{sT+1}, v{t+4}
        v_add_f32 v{t}, s{sT}, v{t+4}
        v_mul_f32 v{t+5}, s{sT+1}, v{t+4}
        v_sub_f32 v{t+5}, s{sT+2}, v{t+5}
        v_mov_b32 v{t+6}, s{sT+3}
        v_fmac_f32 v{t+6}, 0x44800000, v{t+5}
        v_mov_b32 v{t+7}, 0x3727c5ac
        v_fmac_f32 v{t+7}, 0x37000000, v{t+6}
        v_rsq_f32 v{t+1}, v{t+7}
        ''')
    def load_gb(self, pg, pb):
        self.a(f'''
        s_lshl_b32 s{sT}, s{sWAVE}, 3
        s_add_u32 s{sT}, s{sT}, s{sOC0}
        s_lshl_b32 s{sT}, s{sT}, 1
        s_add_u32 s{sT+1}, s{pg}, s{sT}
        s_addc_u32 s{sT+2}, s{pg+1}, 0
        s_add_u32 s{sT+3}, s{pb}, s{sT}
        s_addc_u32 s{sT+4}, s{pb+1}, 0
        s_load_dwordx4 s[{sGAM+4}:{sGAM+7}], s[{sT+1}:{sT+2}], 0
        s_load_dwordx4 s[{sBET+4}:{sBET+7}], s[{sT+3}:{sT+4}], 0
        ''')
    def unpack_gb(self):
        a = self.a
        a('s_waitcnt lgkmcnt(0)')
        for base in (sGAM, sBET):
            for i in range(2):
                a(f's_lshl_b32 s{base+2*i}, s{base+4+i}, 16\n s_and_b32 s{base+2*i+1}, s{base+4+i}, 0xffff0000')
            a(f'''
            s_mov_b32 s{sT}, s{base+6}
            s_mov_b32 s{sT+1}, s{base+7}
            s_lshl_b32 s{base+4}, s{sT}, 16
            s_and_b32 s{base+5}, s{sT}, 0xffff0000
            s_lshl_b32 s{base+6}, s{sT+1}, 16
            s_and_b32 s{base+7}, s{sT+1}, 0xffff0000
            ''')
    def norm_silu_pack(self):
        a = self.a
        SC, SH = TMP + 8, TMP + 24
        Z, E_ = TMP + 40, TMP + 56
        def p(r): return f'v[{r}:{r+1}]'
        for c in range(8): a(f'v_mul_f32 v{SC+2*c}, s{sGAM+c}, v{vT+1}')
        for c in range(8): a(f'v_mov_b32 v{SH+2*c}, s{sBET+c}')
        for c in range(8): a(f'v_fma_f32 v{SH+2*c}, -v{vT}, v{SC+2*c}, v{SH+2*c}')
        for c in range(8): a(f'v_pk_fma_f32 {p(Z+2*c)}, {p(vVAL+2*c)}, {p(SC+2*c)}, {p(SH+2*c)} op_sel_hi:[1,0,0]')
        a(f'v_mov_b32 v{vT+2}, 0xbfb8aa3b')
        for c in range(8): a(f'v_pk_mul_f32 {p(E_+2*c)}, {p(Z+2*c)}, {p(vT+2)} op_sel_hi:[1,0]')
        for i in range(16): a(f'v_exp_f32 v{E_+i}, v{E_+i}')
        for c in range(8): a(f'v_pk_add_f32 {p(E_+2*c)}, {p(E_+2*c)}, 1.0 op_sel_hi:[1,0]')
        for i in range(16): a(f'v_rcp_f32 v{E_+i}, v{E_+i}')
        for c in range(8): a(f'v_pk_mul_f32 {p(Z+2*c)}, {p(Z+2*c)}, {p(E_+2*c)}')
        for e in range(2):
            for cp in range(4):
                a(f'v_cvt_pk_bf16_f32 v{TMP+4*e+cp}, v{Z+2*(2*cp)+e}, v{Z+2*(2*cp+1)+e}')
    def a_store(self, layer, flags=''):
        a = self.a
        a(f'''
        s_lshr_b32 s{sT}, s{sOC0}, 3
        s_add_u32 s{sT}, s{sT}, s{sWAVE}
        s_lshl_b32 s{sT}, s{sT}, 14
        s_lshl_b32 s{sT+1}, s{sB}, 20
        s_add_u32 s{sT}, s{sT}, s{sT+1}
        s_lshl_b32 s{sT+1}, s{sY0}, 9
        s_add_u32 s{sT}, s{sT}, s{sT+1}
        ''')
        if layer is None:
            a(f's_lshl_b32 s{sT+1}, s{sLAYER}, 21\n s_add_u32 s{sT}, s{sT}, s{sT+1}')
        elif layer:
            a(f's_add_u32 s{sT}, s{sT}, {layer << 21}')
        a(f'''
        v_lshrrev_b32 v{vT+2}, 4, v{vLANE}
        v_and_b32 v{vT+3}, 15, v{vLANE}
        v_lshlrev_b32 v{vT+2}, 9, v{vT+2}
        v_lshl_add_u32 v{vT+2}, v{vT+3}, 4, v{vT+2}
        buffer_store_dwordx4 v[{TMP}:{TMP+3}], v{vT+2}, s[{S_WS}:{S_WS+3}], s{sT} offen {flags}
        buffer_store_dwordx4 v[{TMP+4}:{TMP+7}], v{vT+2}, s[{S_WS}:{S_WS+3}], s{sT} offen offset:256 {flags}
        ''')

    def emb_load(self):
        a = self.a
        B = vF
        self.srd(S_A, P_T, 3072)
        self.srd(S_OUT, P_WE, 786432)
        a(f'''
        s_lshl_b32 s{sT}, s{sPXT}, 2
        s_add_u32 s{sT}, s{sT}, s{sWAVE}
        s_mul_i32 s{sT}, s{sT}, 24
        v_lshrrev_b32 v{B+12}, 4, v{vLANE}
        v_mul_u32_u24 v{B+12}, 6, v{B+12}
        v_add_u32 v{B+12}, s{sT}, v{B+12}
        s_mul_i32 s{sT+1}, s{sB}, 1536
        v_lshlrev_b32 v{B+13}, 1, v{B+12}
        buffer_load_dwordx3 v[{B+8}:{B+10}], v{B+13}, s[{S_A}:{S_A+3}], s{sT+1} offen
        v_lshlrev_b32 v{B+15}, 10, v{B+12}
        v_and_b32 v{B+14}, 15, v{vLANE}
        v_lshl_add_u32 v{B+15}, v{B+14}, 2, v{B+15}
        s_lshl_b32 s{sT+1}, s{sOC0}, 1
        s_add_u32 s{sT+2}, s{sT+1}, 3072
        ''')
        for k in range(6):
            a(f'buffer_load_dword v{B+k}, v{B+15}, s[{S_OUT}:{S_OUT+3}], s{sT+1+k//3} offen offset:{(k%3)*1024}')
    def emb_compute_publish(self, flags=''):
        a = self.a
        B = vF
        S = B + 16
        E_ = B + 24
        for k in range(6):
            src = B + 8 + k // 2
            if k % 2 == 0: a(f'v_lshlrev_b32 v{S+k}, 16, v{src}')
            else: a(f'v_and_b32 v{S+k}, 0xffff0000, v{src}')
        for k in range(6): a(f'v_mul_f32 v{E_+k}, 0xbfb8aa3b, v{S+k}')
        for k in range(6): a(f'v_exp_f32 v{E_+k}, v{E_+k}')
        for k in range(6): a(f'v_add_f32 v{E_+k}, 1.0, v{E_+k}')
        for k in range(6): a(f'v_rcp_f32 v{E_+k}, v{E_+k}')
        for k in range(6): a(f'v_mul_f32 v{S+k}, v{S+k}, v{E_+k}')
        A0, A1_ = E_ + 8, E_ + 10
        for k in range(6):
            a(f'v_lshlrev_b32 v{E_+12}, 16, v{B+k}\n v_and_b32 v{E_+13}, 0xffff0000, v{B+k}')
            if k == 0:
                a(f'v_mul_f32 v{A0}, v{E_+12}, v{S}\n v_mul_f32 v{A1_}, v{E_+13}, v{S}')
            else:
                a(f'v_fmac_f32 v{A0}, v{E_+12}, v{S+k}\n v_fmac_f32 v{A1_}, v{E_+13}, v{S+k}')
        for sw in ('v_permlane32_swap_b32', 'v_permlane16_swap_b32'):
            a(f'''
            v_mov_b32 v{E_+12}, v{A0}
            v_mov_b32 v{E_+13}, v{A1_}
            {sw} v{E_+12}, v{A0}
            {sw} v{E_+13}, v{A1_}
            v_add_f32 v{A0}, v{A0}, v{E_+12}
            v_add_f32 v{A1_}, v{A1_}, v{E_+13}
            ''')
        a(f'''
        v_mov_b32 v{A0+1}, s{sTAG}
        v_mov_b32 v{A1_+1}, s{sTAG}
        s_lshl_b32 s{sT}, s{sB}, 4
        s_lshr_b32 s{sT+1}, s{sOC0}, 5
        s_add_u32 s{sT}, s{sT}, s{sT+1}
        s_lshl_b32 s{sT}, s{sT}, 13
        s_lshl_b32 s{sT+1}, s{sPXT}, 2
        s_add_u32 s{sT+1}, s{sT+1}, s{sWAVE}
        s_lshl_b32 s{sT+1}, s{sT+1}, 4
        s_add_u32 s{sT}, s{sT}, s{sT+1}
        s_add_u32 s{sT}, s{sT}, {WS_EMB}
        v_lshlrev_b32 v{E_+12}, 9, v{vLANE}
        s_mov_b64 exec, 0xffff
        buffer_store_dwordx4 v[{A0}:{A0+3}], v{E_+12}, s[{S_WS}:{S_WS+3}], s{sT} offen {flags}
        s_mov_b64 exec, -1
        ''')
    def emb_gather_addr(self, base):
        self.a(f'''
        s_lshl_b32 s{sT+8}, s{sB}, 4
        s_lshr_b32 s{sT+1}, s{sOC0}, 5
        s_add_u32 s{sT+8}, s{sT+8}, s{sT+1}
        s_lshl_b32 s{sT+8}, s{sT+8}, 13
        s_lshl_b32 s{sT+1}, s{sWAVE}, 11
        s_add_u32 s{sT+8}, s{sT+8}, s{sT+1}
        s_add_u32 s{sT+8}, s{sT+8}, {WS_EMB}
        v_lshlrev_b32 v{base+8}, 4, v{vLANE}
        ''')
    def emb_gather_issue(self, base, flags=''):
        self.a(f'''
        buffer_load_dwordx4 v[{base}:{base+3}], v{base+8}, s[{S_WS}:{S_WS+3}], s{sT+8} offen {flags}
        buffer_load_dwordx4 v[{base+4}:{base+7}], v{base+8}, s[{S_WS}:{S_WS+3}], s{sT+8} offen offset:1024 {flags}
        ''')
    def emb_gather_reduce(self, base):
        self.wave_reduce([base, base+2, base+4, base+6], full=False)
        for q in range(2):
            for ps in range(2):
                for e in range(2):
                    self.a(f'v_readlane_b32 s{sEMB + 4*q + 2*ps + e}, v{base + 4*q + 2*e}, {31 + 32*ps}')

    def conv_addr_dma(self):
        t = vT
        self.a(f'''
        s_and_b32 s{sT}, s{sWAVE}, 1
        s_lshl_b32 s{sT}, s{sT}, 3
        v_lshrrev_b32 v{t}, 3, v{vLANE}
        v_add_u32 v{t}, s{sT}, v{t}
        v_lshrrev_b32 v{t+1}, 1, v{t}
        v_lshrrev_b32 v{t+2}, 3, v{t}
        v_xor_b32 v{t+2}, v{t+2}, v{t}
        v_and_b32 v{t+2}, 1, v{t+2}
        v_lshl_add_u32 v{t+2}, v{t+2}, 3, v{t+1}
        v_and_b32 v{t+3}, 7, v{vLANE}
        v_xor_b32 v{t+3}, v{t+3}, v{t+1}
        v_mul_u32_u24 v{vDMA[0]}, 9216, v{t+2}
        v_lshl_add_u32 v{vDMA[0]}, v{t+3}, 4, v{vDMA[0]}
        s_lshr_b32 s{sT+1}, s{sWAVE}, 1
        s_mul_i32 s{sT+2}, s{sT+1}, 1152
        s_add_u32 s{sT+2}, s{sT+2}, 4096
        v_add_u32 v{vDMA[0]}, s{sT+2}, v{vDMA[0]}
        s_mul_i32 s{sW0}, s{sOC0}, 9216
        s_add_u32 s{sW0}, s{sW0}, 4096
        s_mul_i32 s{sWOFF}, s{sWAVE}, 9216
        s_mov_b32 s{S_W+3}, 0x00020000
        ''')
        for k in range(1, 9):
            self.a(f'v_add_u32 v{vDMA[k]}, {128*k - 1024*(k%4)}, v{vDMA[0]}')
    def w_srd(self, ptr):
        return [f's_sub_u32 s{S_W}, s{ptr}, 8192', f's_subb_u32 s{S_W+1}, s{ptr+1}, 0']
    WREC = 4718592 + 8192
    def dma_op(self, k, slot, inloop=False):
        ops = []
        base = sWOFF2 if (inloop and slot >= 2) else sWOFF
        if k % 4 == 0: ops.append(f's_add_u32 m0, s{base}, {slot*SLOT + 1024*k}')
        ops.append(f'buffer_load_dwordx4 v{vDMA[k]}, s[{S_W}:{S_W+3}], s{sSOFW} offen offset:{1024*(k%4)} lds')
        return ops
    UOFF = [0, 147456, 2304, 149760]
    def dma_unit(self, slot, soff_base, uoff):
        self.a(f's_add_u32 s{sSOFW}, s{soff_base}, {uoff}')
        for k in range(9):
            for o in self.dma_op(k, slot): self.a(o)
    def conv_addr_rd(self):
        a = self.a
        t = vT
        a(f'''
        v_and_b32 v{t}, 15, v{vLANE}
        v_lshrrev_b32 v{t+1}, 2, v{t}
        v_lshrrev_b32 v{t+2}, 3, v{t}
        v_xor_b32 v{t+1}, v{t+1}, v{t+2}
        v_and_b32 v{t+1}, 1, v{t+1}
        v_and_b32 v{t+2}, 7, v{t}
        v_lshl_add_u32 v{t+1}, v{t+2}, 1, v{t+1}
        v_lshrrev_b32 v{t+7}, 3, v{t+1}
        v_mul_u32_u24 v{t+7}, 9216, v{t+7}
        v_and_b32 v{t+1}, 7, v{t+1}
        v_lshl_add_u32 v{t+1}, v{t+1}, 7, v{t+7}
        s_lshr_b32 s{sT+1}, s{sWAVE}, 1
        s_mul_i32 s{sT+2}, s{sT+1}, {18432 - 9216}
        v_add_u32 v{t+1}, s{sT+2}, v{t+1}
        v_lshrrev_b32 v{t+3}, 4, v{vLANE}
        v_mul_u32_u24 v{t+4}, 9, v{t+3}
        s_mul_i32 s{sT}, s{sWAVE}, 36
        v_add_u32 v{t+4}, s{sT}, v{t+4}
        ''')
        for j in range(8):
            a(f'''
            v_add_u32 v{t+5}, {j}, v{t+4}
            v_lshrrev_b32 v{t+6}, 3, v{t+5}
            v_and_b32 v{t+5}, 7, v{t+5}
            v_xor_b32 v{t+5}, v{t+5}, v{t+2}
            v_lshl_add_u32 v{t+6}, v{t+6}, 10, v{t+1}
            v_lshl_add_u32 v{vRD+j}, v{t+5}, 4, v{t+6}
            v_add_u32 v{vRD2+j}, {2*SLOT}, v{vRD+j}
            ''')
    def conv_addr_act(self):
        t = vT
        self.a(f'''
        v_and_b32 v{t}, 15, v{vLANE}
        v_lshrrev_b32 v{t+3}, 4, v{vLANE}
        v_lshlrev_b32 v{vACT}, 4, v{t}
        v_lshl_add_u32 v{vACT}, v{t+3}, 14, v{vACT}
        s_lshl_b32 s{sT}, s{sWAVE}, 16
        s_lshl_b32 s{sT+1}, s{sY0}, 9
        s_add_u32 s{sT}, s{sT}, s{sT+1}
        v_add_u32 v{vACT}, s{sT}, v{vACT}
        s_cmp_eq_u32 s{sPXT}, 0
        s_cselect_b32 s{sT}, 0x40000000, -512
        v_add_u32 v{vTOP}, s{sT}, v{vACT}
        s_cmp_eq_u32 s{sPXT}, 7
        s_cselect_b32 s{sT}, 0x40000000, 2048
        v_add_u32 v{vBOT}, s{sT}, v{vACT}
        ''')
    def act_op(self, R, j, e, flags=''):
        if j == 0: ad, off = vTOP, 0
        elif j == 5: ad, off = vBOT, 0
        else: ad, off = vACT, (j - 1) * 512
        return f'buffer_load_dwordx4 {r4(R+8*j+4*e)}, v{ad}, s[{S_A}:{S_A+3}], s{sSOFA} offen offset:{off + 256*e} {flags}'
    def raw_reads(self, slot):
        base = vRD if slot < 2 else vRD2
        off = (slot % 2) * SLOT
        return [f'ds_read_b128 {r4(vRAW+4*j)}, v{base + (j % 8)} offset:{off + (1024 if j == 8 else 0)}' for j in range(9)]
    def perms(self, kx):
        ops = []
        for ky in range(3):
            t = 3 * ky + kx
            for m in range(4):
                aidx = (18 * m + t) // 2; bidx = (18 * m + 9 + t) // 2
                sel = sSELE if t % 2 == 0 else sSELO
                ops.append(f'v_perm_b32 v{vF+4*t+m}, v{vRAW+bidx}, v{vRAW+aidx}, s{sel}')
        return ops
    def shifts(self, R, plus):
        ops = []
        for j in range(6):
            for i in range(4):
                if plus: ops.append(f'v_mov_b32_dpp v{vS+24+4*j+i}, v{R+8*j+i} row_shl:1 row_mask:0xf bank_mask:0xf bound_ctrl:0')
                else: ops.append(f'v_mov_b32_dpp v{vS+4*j+i}, v{R+8*j+4+i} row_shr:1 row_mask:0xf bank_mask:0xf bound_ctrl:0')
        return ops
    def mfmas(self, ob, R):
        ops = []
        for kx in (1, 0, 2):
            for ky in range(3):
                eorder = (0, 1) if kx == 1 else ((1, 0) if kx == 0 else (0, 1))
                for e in eorder:
                    for i in range(4):
                        j = i + ky
                        if kx == 1: X = R + 8*j + 4*e
                        elif kx == 0: X = (R + 8*j) if e == 1 else (vS + 4*j)
                        else: X = (R + 8*j + 4) if e == 0 else (vS + 24 + 4*j)
                        acc = 32*ob + 8*i + 4*e
                        ops.append(f'v_mfma_f32_16x16x32_bf16 a[{acc}:{acc+3}], {r4(vF+4*(3*ky+kx))}, {r4(X)}, a[{acc}:{acc+3}]')
        return ops

    def body_stream(self, aflags=''):
        NG = 288
        chains = []
        def chain(items): chains.append(list(items))
        def lin(ops, g0, g1, cost=1, slack=6):
            n = len(ops)
            return [([o] if isinstance(o, str) else o, g0 + (k * (g1 - g0)) // n, min(g0 + (k * (g1 - g0)) // n + slack, g1), cost) for k, o in enumerate(ops)]
        for st in range(4):
            g = 72 * st
            rs = (st + 1) % 4
            c = lin(self.perms(2), g, g + 7, slack=2)
            c += [(['@BAR'], g + 7, g + 8, 1)]
            c += lin(self.raw_reads(rs), g + 8, g + 17, slack=3)
            c += [(['s_waitcnt lgkmcnt(0)'], g + 26, g + 28, 1)]
            c += lin(self.perms(1), g + 26, g + 47, slack=6)
            c += lin(self.perms(0), g + 48, g + 71, slack=6)
            chain(c)
        for P in range(2):
            g = 144 * P
            R, RN = vR[P], vR[1 - P]
            chain(lin(self.shifts(R, False), g + 2, g + 27, slack=4) + lin(self.shifts(R, True), g + 27, g + 51, slack=4))
        for P in range(2):
            g = 144 * P
            RN = vR[1 - P]
            fr = [RN + 4 * k for k in range(12)]
            ops = [f'v_max3_u32 v{vCHK}, v{fr[0]}, v{fr[1]}, v{fr[2]}']
            ops += [f'v_max3_u32 v{vCHK}, v{vCHK}, v{fr[k]}, v{fr[k+1]}' for k in (3, 5, 7, 9)]
            ops += [f'v_max_u32 v{vCHK}, v{vCHK}, v{fr[11]}', f'v_cmp_eq_u32 vcc, -1, v{vCHK}']
            c = lin(ops, g + 122, g + 138, slack=2)
            c += [(['s_cmp_lg_u64 vcc, 0', f's_cbranch_scc1 L_retry{P}', f'@LBL L_back{P}'], g + 141, g + 142, 2)]
            chain(c)
        vm = []
        acts = [(j, e) for j in range(6) for e in range(2)]
        pat = ['AADAADAADAADAAD', 'AADDDDDDDDDDDDD']
        dk = 0
        for P in range(2):
            RN = vR[1 - P]
            ai = 0
            for ob in range(2):
                g = 144 * P + 72 * ob
                for idx, ch in enumerate(pat[ob]):
                    gpos = g + 9 + (idx * 62) // 15
                    if ch == 'A':
                        pre = []
                        if ai == 0:
                            pre = [f's_mov_b32 s{S_A+2}, {1<<20}'] if P == 0 else [f's_mov_b32 s{S_A+2}, s{sAREC1}']
                            vm.append((pre, gpos - 2, gpos, 1))
                        j, e = acts[ai]
                        vm.append(([self.act_op(RN, j, e, aflags)], gpos, gpos + 3, 3)); ai += 1
                        if ai == 12: vm.append(([f's_add_u32 s{sSOFA}, s{sSOFA}, 262144'], gpos, gpos + 4, 1))
                    else:
                        u, k = divmod(dk, 9)
                        if k == 0:
                            if u == 0: vm.append(([f's_mov_b32 s{S_W+2}, s{sRECA}'], gpos - 3, gpos, 1))
                            if u == 2: vm.append(([f's_mov_b32 s{S_W+2}, s{sRECB}'], gpos - 3, gpos, 1))
                            if u > 0: vm.append(([f's_add_u32 s{sSOFW}, s{sSOFW}, {self.UOFF[u] - self.UOFF[u-1]}'], gpos - 3, gpos, 1))
                        for o in self.dma_op(k, u, True):
                            if o.startswith('s_'): vm.append(([o], gpos - 2, gpos, 1))
                            else: vm.append(([o], gpos, gpos + 3, 3))
                        dk += 1
        assert dk == 36
        chain(vm)
        heads = [0] * len(chains)
        gaps = [[] for _ in range(NG)]
        debt = 0
        CAP = 2
        for gi in range(NG):
            cap = CAP - debt; debt = 0
            while True:
                cand = [(chains[c][heads[c]][2], c) for c in range(len(chains)) if heads[c] < len(chains[c]) and chains[c][heads[c]][1] <= gi]
                if not cand: break
                cand.sort()
                dl, c = cand[0]
                ops, e_, l_, cost = chains[c][heads[c]]
                if cap <= 0 and dl > gi: break
                gaps[gi] += ops; heads[c] += 1; cap -= cost
            if cap < 0: debt = min(-cap, 2)
        for c in range(len(chains)): assert heads[c] == len(chains[c]), 'unscheduled'
        mf = []
        for st in range(4): mf += self.mfmas(st & 1, vR[st >> 1])
        out = []
        for i, m in enumerate(mf):
            out.append(m); out += gaps[i]
        self.gap_hist = [len(x) for x in gaps]
        if 'novm' in EXP: out = [o for o in out if not o.startswith('buffer_load')]
        return out

    def loop_consts(self):
        return [
            f's_cmp_eq_u32 s{sQ}, 0',
            f's_cselect_b32 s{sT}, s{P_W1}, s{P_W2}',
            f's_cselect_b32 s{sT+1}, s{P_W1+1}, s{P_W2+1}',
            f's_sub_u32 s{S_W}, s{sT}, 8192',
            f's_subb_u32 s{S_W+1}, s{sT+1}, 0',
            f's_cmp_lt_u32 s{sQ}, 3',
            f's_cselect_b32 s{sRECA}, {self.WREC}, 0',
            f's_bitcmp0_b32 s{sQ}, 0',
            f's_cselect_b32 s{sRECB}, {self.WREC}, 0',
            f's_cselect_b32 s{sAREC1}, {1<<20}, 0',
            f's_cselect_b32 s{sWOFF2}, s{sWOFF}, 98304',
            f's_cselect_b32 s{sT}, 4608, 0',
            f's_add_u32 s{sSOFW}, s{sW0}, s{sT}',
        ]

    def verify_body(self, body):
        import re
        if EXP & {'novm'}: return
        val = {}
        nm = 0; nraw = 0; nact = 0
        for rep in range(3):
            for o in body:
                if o.startswith('@'): continue
                ins = Ins(o)
                if ins.mn.startswith('ds_read'):
                    unit = nraw // 9 + 1; j = nraw % 9; nraw += 1
                    for i, r in enumerate(sorted(ins.wr)): val[r] = ('raw', unit, 4*j + i)
                elif ins.mn == 'v_perm_b32':
                    d = int(ins.ops[0][1:]); b_ = val.get(('v', int(ins.ops[1][1:]))); a_ = val.get(('v', int(ins.ops[2][1:])))
                    t, m = divmod(d - vF, 4)
                    if a_ and b_:
                        assert a_[1] == b_[1] and a_[2] == (18*m+t)//2 and b_[2] == (18*m+9+t)//2
                        val[('v', d)] = ('F', a_[1], t)
                    else: val[('v', d)] = None
                elif ins.kind == 'vmem' and not ins.lds_dma:
                    ss = nact // 12 + 1; j, e = divmod(nact % 12, 2); nact += 1
                    for r in ins.wr: val[r] = ('R', ss, j, e)
                elif ins.mn.startswith('v_mov_b32_dpp'):
                    d = int(ins.ops[0][1:]); src = val.get(('v', int(ins.ops[1].split()[0][1:])))
                    val[('v', d)] = ('S',) + src[1:] if src else None
                elif ins.kind == 'mfma':
                    step = nm // 72; k = nm % 72; nm += 1
                    kx = (1, 0, 2)[k // 24]; ky = (k % 24) // 8
                    fa = {val.get(r) for r in regs_of(ins.ops[1])}; xb = {val.get(r) for r in regs_of(ins.ops[2])}
                    if rep >= 1:
                        assert fa == {('F', step, 3*ky+kx)}, (o, fa, step)
                        assert len(xb) == 1 and list(xb)[0][1] == step // 2, (o, xb, step)
    def conv_loop(self, aflags=''):
        a = self.a
        body = self.body_stream(aflags)
        waits = {}
        issued = []
        grp = -1
        step = 0
        for rep in range(3):
            w_rep = {}
            for pos, o in enumerate(body):
                need_idx = -1
                if o == '@BAR':
                    want = step + 1 - 4
                    for k, (tag, regs) in enumerate(issued):
                        if tag == ('dma', want): need_idx = k
                    step += 1
                elif o.startswith('@'):
                    pass
                else:
                    ins = Ins(o)
                    touched = ins.rd | ins.wr
                    if ins.kind != 'vmem':
                        for k, (tag, regs) in enumerate(issued):
                            if regs & touched: need_idx = k
                if need_idx >= 0:
                    w_rep[pos] = len(issued) - 1 - need_idx
                    issued = issued[need_idx + 1:]
                if not o.startswith('@'):
                    ins = Ins(o)
                    if ins.kind == 'vmem':
                        if ins.lds_dma:
                            if f'v{vDMA[0]},' in o: grp += 1
                            issued.append((('dma', grp), set()))
                        else:
                            issued.append((('ld', 0), set(ins.wr)))
            waits[rep] = w_rep
        assert waits[1] == waits[2], 'not periodic'
        W = waits[2]
        self.verify_body(body)
        L = self.lbl('conv')
        a.label(L)
        for o in self.loop_consts(): a(o)
        for pos, o in enumerate(body):
            if pos in W and 'nowait' not in EXP:
                assert W[pos] < 64
                a(f's_waitcnt vmcnt({W[pos]})')
            if o.startswith('@LBL'): a.label(o.split()[1])
            else: a('s_barrier' if o == '@BAR' else o)
        a(f's_add_u32 s{sQ}, s{sQ}, 1')
        a(f's_bitcmp1_b32 s{sQ}, 0')
        a(f's_cbranch_scc1 {L}')
        a.check_backedge(L)

    def act_poll(self, R, soff, aflags, name, first_issued=False, extra_after=0):
        a = self.a
        L = self.lbl(name); D = self.lbl(name + '_ok'); C = self.lbl(name + '_chk')
        a(f's_mov_b32 s{sT+6}, 0')
        if first_issued:
            a(f's_waitcnt vmcnt({extra_after})')
            a(f's_branch {C}')
        a.label(L)
        for j in range(6):
            for e in range(2):
                a(self.act_op(R, j, e, aflags).replace(f's{sSOFA} offen', f's{soff} offen'))
        a('s_waitcnt vmcnt(0)')
        a.label(C)
        fr = [R + 4 * k for k in range(12)]
        a(f'v_max3_u32 v{vCHK}, v{fr[0]}, v{fr[1]}, v{fr[2]}')
        for k in (3, 5, 7, 9): a(f'v_max3_u32 v{vCHK}, v{vCHK}, v{fr[k]}, v{fr[k+1]}')
        a(f'''
        v_max_u32 v{vCHK}, v{vCHK}, v{fr[11]}
        v_cmp_eq_u32 vcc, -1, v{vCHK}
        s_add_u32 s{sT+6}, s{sT+6}, 1
        s_cmp_eq_u64 vcc, 0
        s_cbranch_scc1 {D}
        s_sleep 1
        s_cmp_lt_u32 s{sT+6}, 0x8000
        s_cbranch_scc1 {L}
        ''')
        a.label(D)
    def retry_routines(self, aflags):
        a = self.a
        for P in range(2):
            a.label(f'L_retry{P}')
            a(f's_sub_u32 s{sT+5}, s{sSOFA}, 262144')
            self.act_poll(vR[1 - P], sT + 5, aflags, f'rt{P}')
            a(f's_branch L_back{P}')
    def first_frags(self):
        a = self.a
        for o in self.raw_reads(0): a(o)
        a('s_waitcnt lgkmcnt(0)')
        for o in self.perms(1) + self.perms(0): a(o)
    def zero_acc(self):
        for i in range(64): self.a(f'v_accvgpr_write_b32 a{i}, 0')
    def first_acts(self, aflags=''):
        a = self.a
        a(f's_mov_b32 s{sSOFA}, 0\n s_mov_b32 s{S_A+2}, {1<<20}')
        for j in range(6):
            for e in range(2):
                a(self.act_op(vR[0], j, e, aflags))
        a(f's_mov_b32 s{sSOFA}, 262144')

    def reduce_addr(self, scratch):
        a = self.a
        t = vT
        REC, SRC = 2112, 16896
        a(f'''
        v_and_b32 v{t}, 15, v{vLANE}
        v_lshrrev_b32 v{t+1}, 4, v{vLANE}
        v_and_b32 v{t+2}, 7, v{t}
        v_xor_b32 v{t+3}, v{t+2}, v{t+1}
        s_mul_i32 s{sT}, s{sWAVE}, {SRC}
        s_add_u32 s{sT}, s{sT}, {scratch}
        v_lshlrev_b32 v{t+6}, 7, v{t}
        v_add_u32 v{t+7}, s{sT}, v{t+6}
        v_lshl_add_u32 v{t+4}, v{t+3}, 4, v{t+7}
        v_xor_b32 v{t+3}, 4, v{t+3}
        v_lshl_add_u32 v{t+5}, v{t+3}, 4, v{t+7}
        v_mul_u32_u24 v{t+1}, {2*REC}, v{t+1}
        v_add_u32 v{t+1}, v{t+1}, v{t+6}
        v_add_u32 v{t+1}, {scratch}, v{t+1}
        s_lshl_b32 s{sT}, s{sWAVE}, 1
        v_xor_b32 v{t+2}, s{sT}, v{t+2}
        v_lshl_add_u32 v{t+8}, v{t+2}, 4, v{t+1}
        v_xor_b32 v{t+2}, 1, v{t+2}
        v_lshl_add_u32 v{t+9}, v{t+2}, 4, v{t+1}
        ''')
    def conv_reduce(self, scratch, vm=0):
        a = self.a
        t = vT
        REC, SRC = 2112, 16896
        self.reduce_addr(scratch)
        for ob in range(2):
            for i in range(4):
                for e in range(2):
                    acc = 32*ob + 8*i + 4*e
                    a(f'ds_write_b128 v{t+4+ob}, a[{acc}:{acc+3}] offset:{(2*i+e)*REC}')
        a('s_waitcnt lgkmcnt(0)')
        a('s_barrier')
        RB = TMP
        for src in range(4):
            for e in range(2):
                for hh in range(2):
                    a(f'ds_read_b128 {r4(RB + 16*src + 4*(2*e+hh))}, v{t+8+hh} offset:{src*SRC + e*REC}')
        for src in range(1, 4):
            a(f's_waitcnt lgkmcnt({12 - 4*src})')
            for e in range(2):
                for hh in range(2):
                    for tt in range(4):
                        c = 4 * hh + tt
                        acc = RB + 4*(2*e+hh) + tt
                        dst = vVAL + 2*c + e if src == 3 else acc
                        a(f'v_add_f32 v{dst}, v{acc}, v{RB + 16*src + 4*(2*e+hh) + tt}')
    def out_store(self):
        a = self.a
        so = self.xsoffs()
        for c in range(8):
            a(f'''
            v_lshlrev_b32 v{TMP+2*c}, 16, v{vXPK+c}
            v_and_b32 v{TMP+2*c+1}, 0xffff0000, v{vXPK+c}
            v_add_f32 v{TMP+2*c}, v{TMP+2*c}, v{vVAL+2*c}
            v_add_f32 v{TMP+2*c+1}, v{TMP+2*c+1}, v{vVAL+2*c+1}
            v_cvt_pk_bf16_f32 v{TMP+16+c}, v{TMP+2*c}, v{TMP+2*c+1}
            buffer_store_dword v{TMP+16+c}, v{vXA}, s[{S_OUT}:{S_OUT+3}], {so[c//2]} offen offset:{(c%2)*2048}
            ''')
    def begin_kernel(self, name):
        self.a.raw(f'.globl {name}\n.p2align 8\n.type {name},@function\n{name}:')
    def end_kernel(self, exit_label):
        self.a.label(exit_label)
        self.a('s_endpgm')

def kd(name, vgpr, agpr, sgpr=102):
    acc = (vgpr + 3) // 4 * 4
    return f""".p2align 6
.amdhsa_kernel {name}
  .amdhsa_next_free_vgpr {acc + agpr}
  .amdhsa_next_free_sgpr {sgpr}
  .amdhsa_accum_offset {acc}
  .amdhsa_group_segment_fixed_size 0
  .amdhsa_kernarg_size 96
  .amdhsa_user_sgpr_count 2
  .amdhsa_user_sgpr_kernarg_segment_ptr 1
  .amdhsa_system_sgpr_workgroup_id_x 1
.end_amdhsa_kernel
"""

COMM = DUMMY + 8192

sABASE = 35

def gen_fused():
    g = Gen(); a = g.a
    name = 'standalone__adm_resblock__diffusion_kernel'
    hdr = f'; @launch grid=(256,1,1) block=(256,1,1) lds={LDS_BYTES}\n'
    hdr += '.amdgcn_target "amdgcn-amd-amdhsa--gfx950"\n.text\n'
    SC = 'sc1'
    AF = SC
    t = vT
    SLP = 's_sleep 1'
    g.begin_kernel(name); g.stamp(0); g.setup('L_exit')
    if 'nocodepf' not in EXP:
        a(f's_getpc_b64 s[{S_OUT}:{S_OUT+1}]')
        a.label('L_pc')
        a(f'''
        s_sub_u32 s{S_OUT}, s{S_OUT}, L_pc-{name}
        s_subb_u32 s{S_OUT+1}, s{S_OUT+1}, 0
        s_mov_b32 s{S_OUT+2}, L_code_end-{name}
        s_mov_b32 s{S_OUT+3}, 0x00020000
        v_lshlrev_b32 v{t+14}, 4, v0
        s_mov_b32 m0, {DUMMY}
        s_movk_i32 s{sT+1}, 4096
        s_movk_i32 s{sT+2}, 8192
        s_movk_i32 s{sT+3}, 12288
        buffer_load_dwordx4 v{t+14}, s[{S_OUT}:{S_OUT+3}], 0 offen lds
        buffer_load_dwordx4 v{t+14}, s[{S_OUT}:{S_OUT+3}], s{sT+1} offen lds
        buffer_load_dwordx4 v{t+14}, s[{S_OUT}:{S_OUT+3}], s{sT+2} offen lds
        buffer_load_dwordx4 v{t+14}, s[{S_OUT}:{S_OUT+3}], s{sT+3} offen lds
        ''')
    g.xtile_addr()
    g.conv_addr_dma()
    def a_voff(r):
        a(f'''
        v_lshrrev_b32 v{r}, 4, v{vLANE}
        v_and_b32 v{r+1}, 15, v{vLANE}
        v_lshlrev_b32 v{r}, 9, v{r}
        v_lshl_add_u32 v{r}, v{r+1}, 4, v{r}
        ''')
    a('s_waitcnt lgkmcnt(0)')
    g.stamp(1)
    g.srd(S_X, P_X, 2 << 20)
    g.xtile_load()
    a(f'''
    s_lshl_b32 s{sT}, s{sB}, 8
    s_add_u32 s{sT}, s{sT}, {WS_EPOCH}
    s_add_u32 s{sT+1}, s{P_WS}, s{sT}
    s_addc_u32 s{sT+2}, s{P_WS+1}, 0
    s_load_dword s{sTAG}, s[{sT+1}:{sT+2}], 0
    ''')
    g.srd(S_WS, P_WS, WS_SIZE)
    if 'dbg' in EXP:
        a(f's_mov_b32 s{P_X}, s{P_DBG}\n s_mov_b32 s{P_X+1}, s{P_DBG+1}')
    g.emb_load()
    a(f'''
    s_lshr_b32 s{sABASE}, s{sOC0}, 3
    s_add_u32 s{sABASE}, s{sABASE}, s{sWAVE}
    s_lshl_b32 s{sABASE}, s{sABASE}, 14
    s_lshl_b32 s{sT+1}, s{sB}, 20
    s_add_u32 s{sABASE}, s{sABASE}, s{sT+1}
    s_lshl_b32 s{sT+1}, s{sY0}, 9
    s_add_u32 s{sABASE}, s{sABASE}, s{sT+1}
    ''')
    def warm(ptr, k0, k1, rowadj=0):
        for o in g.w_srd(ptr): a(o)
        a(f'''
        s_mov_b32 s{S_W+2}, {g.WREC}
        s_lshl_b32 s{sT}, s{sPXT}, 2
        s_add_u32 s{sT}, s{sT}, s{sWAVE}
        s_add_u32 s{sT}, s{sT}, s{sOC0}
        s_mul_i32 s{sT}, s{sT}, 9216
        s_add_u32 s{sT}, s{sT}, {(8192 + k0 + rowadj * 9216) & 0xffffffff}
        v_lshlrev_b32 v{t+14}, 4, v{vLANE}
        s_mov_b32 m0, {DUMMY}
        ''')
        n = (k1 - k0 + 1023) // 1024
        for k in range(n):
            if k and k % 4 == 0: a(f's_add_u32 s{sT}, s{sT}, 4096')
            a(f'buffer_load_dwordx4 v{t+14}, s[{S_W}:{S_W+3}], s{sT} offen offset:{1024*(k%4)} lds')
        return n
    def bulk_units(u0):
        Ls = g.lbl('bulk')
        a(f's_mov_b32 s{S_W+2}, {g.WREC}')
        for u in (u0, u0 + 1): g.dma_unit(u, sW0, g.UOFF[u])
        a(f's_cmp_lg_u32 s{sWAVE}, 2\n s_cbranch_scc1 {Ls}')
        a(f's_sub_u32 s{sT+5}, s{sW0}, 1152\n s_sub_u32 s{sWOFF}, s{sWOFF}, 18432')
        for u in (u0, u0 + 1): g.dma_unit(u, sT + 5, g.UOFF[u])
        a(f's_add_u32 s{sWOFF}, s{sWOFF}, 18432')
        a.label(Ls)
    for o in g.w_srd(P_W1): a(o)
    a(f's_cmp_eq_u32 s{sWAVE}, 0\n s_cbranch_scc1 L_w0skip')
    nw = warm(P_W1, 0, W1A)
    a(f's_cmp_lg_u32 s{sWAVE}, 1\n s_cbranch_scc1 L_w1skip')
    warm(P_W1, 0, W1A, rowadj=-1)
    a.label('L_w1skip')
    if EARLYU: bulk_units(0)
    a.label('L_w0skip')
    g.load_gb(P_G1, P_B1)
    g.conv_addr_rd(); g.conv_addr_act()
    a(f's_mov_b32 s{sLAYER}, 0\n s_mov_b32 s{sQ}, 0')
    g.unpack_gb()
    a(f's_add_u32 s{sTAG}, s{sTAG}, 1')
    nu = 18 if EARLYU else 0
    cnt = [7, 7 + 2 * nw + nu, 7 + nw + 2 * nu, 7 + nw + nu]
    for wv in range(3):
        a(f's_cmp_eq_u32 s{sWAVE}, {wv}\n s_cbranch_scc1 L_xw{wv}')
    a(f's_waitcnt vmcnt({cnt[3]})\n s_branch L_xw')
    for wv in range(3):
        a.label(f'L_xw{wv}')
        a(f's_waitcnt vmcnt({cnt[wv]})')
        if wv < 2: a('s_branch L_xw')
    a.label('L_xw')
    g.stamp(2)
    g.xtile_unpack()

    a.label('L_layer')
    g.wave_stats()
    a(f'''
    v_mov_b32 v{t+5}, v{t+6}
    s_lshl_b32 s{sT}, s{sWAVE}, 3
    s_add_u32 s{sT}, s{sT}, {COMM}
    v_mov_b32 v{t}, s{sT}
    ds_write_b64 v{t}, v[{t+4}:{t+5}]
    v_and_b32 v{t+1}, 3, v{vLANE}
    v_lshlrev_b32 v{t+1}, 3, v{t+1}
    v_add_u32 v{t+1}, {COMM}, v{t+1}
    v_and_b32 v{t+15}, 31, v{vLANE}
    v_lshlrev_b32 v{t+14}, 7, v{t+15}
    v_lshlrev_b32 v{t+15}, 4, v{t+15}
    ''')
    g.stat_base(sT + 8, None)
    a(f'''
    s_lshr_b32 s{sT+1}, s2, 3
    s_lshl_b32 s{sT+1}, s{sT+1}, 4
    s_add_u32 s{sT+2}, s{sT+8}, s{sT+1}
    s_sub_u32 s1, s{sT+8}, {WS_STAT}
    s_lshl_b32 s1, s1, 1
    s_add_u32 s1, s1, {WS_STATB}
    s_lshl_b32 s{sT+1}, s{sT+1}, 3
    s_add_u32 s{sT+3}, s1, s{sT+1}
    s_mov_b32 s0, s{sT+3}
    s_waitcnt lgkmcnt(0)
    s_barrier
    s_cmp_lg_u32 s{sWAVE}, 0
    s_cbranch_scc1 L_st_nopub
    ds_read_b64 v[{t+4}:{t+5}], v{t+1}
    s_waitcnt lgkmcnt(0)
    v_readfirstlane_b32 s{sT}, v{t+4}
    v_subrev_f32 v{t}, s{sT}, v{t+4}
    v_mul_f32 v{t+1}, v{t}, v{t}
    v_add_f32_dpp v{t}, v{t}, v{t} quad_perm:[1,0,3,2] row_mask:0xf bank_mask:0xf
    v_add_f32_dpp v{t+5}, v{t+5}, v{t+5} quad_perm:[1,0,3,2] row_mask:0xf bank_mask:0xf
    v_add_f32_dpp v{t+1}, v{t+1}, v{t+1} quad_perm:[1,0,3,2] row_mask:0xf bank_mask:0xf
    v_add_f32_dpp v{t}, v{t}, v{t} quad_perm:[2,3,0,1] row_mask:0xf bank_mask:0xf
    v_add_f32_dpp v{t+5}, v{t+5}, v{t+5} quad_perm:[2,3,0,1] row_mask:0xf bank_mask:0xf
    v_add_f32_dpp v{t+1}, v{t+1}, v{t+1} quad_perm:[2,3,0,1] row_mask:0xf bank_mask:0xf
    v_mul_f32 v{t+2}, 0x3e800000, v{t}
    v_add_f32 v{t+4}, s{sT}, v{t+2}
    v_fma_f32 v{t+1}, -v{t}, v{t+2}, v{t+1}
    v_fmac_f32 v{t+5}, 0x44800000, v{t+1}
    v_mov_b32 v{t+6}, v{t+5}
    v_mov_b32 v{t+5}, s{sTAG}
    v_mov_b32 v{t+7}, s{sTAG}
    v_mov_b32 v{t}, 0
    s_mov_b64 exec, 1
    buffer_store_dwordx4 v[{t+4}:{t+7}], v{t}, s[{S_WS}:{S_WS+3}], s{sT+2} offen
    buffer_store_dwordx4 v[{t+4}:{t+7}], v{t}, s[{S_WS}:{S_WS+3}], s{sT+3} offen {SC}
    s_mov_b64 exec, -1
    ''')
    a.label('L_st_nopub')
    g.stamp_l(3)
    a(f's_cmp_lg_u32 s{sWAVE}, 0\n s_cbranch_scc1 L_st_other')
    a(f'''
    s_mov_b32 s{sT+6}, 0
    s_getreg_b32 s{sT}, hwreg(HW_REG_XCC_ID)
    s_and_b32 s{sT}, s{sT}, 7
    s_and_b32 s{sT+1}, s2, 7
    s_cmp_eq_u32 s{sT}, s{sT+1}
    s_cselect_b32 s{sT+4}, {BMASK}, 0
    ''')
    a.label('L_pstat')
    a(f'''
    buffer_load_dwordx4 v[{t+8}:{t+11}], v{t+15}, s[{S_WS}:{S_WS+3}], s{sT+8} offen {SC}
    s_waitcnt vmcnt(0)
    v_cmp_ne_u32 vcc, s{sTAG}, v{t+9}
    v_cmp_ne_u32_e64 s[52:53], s{sTAG}, v{t+11}
    s_or_b64 vcc, vcc, s[52:53]
    s_cmp_eq_u64 vcc, 0
    s_cbranch_scc1 L_pstat_done
    s_sleep {PSLEEP}
    s_add_u32 s{sT+6}, s{sT+6}, 1
    s_and_b32 s{sT}, s{sT+6}, s{sT+4}
    s_cmp_lg_u32 s{sT}, 0
    s_cbranch_scc1 L_pstat
    buffer_load_dwordx4 v[{t+8}:{t+11}], v{t+14}, s[{S_WS}:{S_WS+3}], s1 offen {SC}
    s_waitcnt vmcnt(0)
    v_cmp_ne_u32 vcc, s{sTAG}, v{t+9}
    v_cmp_ne_u32_e64 s[52:53], s{sTAG}, v{t+11}
    s_or_b64 vcc, vcc, s[52:53]
    s_cmp_eq_u64 vcc, 0
    s_cbranch_scc1 L_pstat_done
    s_cmp_lt_u32 s{sT+6}, 0x100000
    s_cbranch_scc1 L_pstat
    ''')
    a.label('L_pstat_done')
    g.stamp_l(4)
    a(f'''
    v_readfirstlane_b32 s{sT}, v{t+8}
    v_subrev_f32 v{t}, s{sT}, v{t+8}
    v_mul_f32 v{t+1}, v{t}, v{t}
    ''')
    g.wave_reduce([t, t+1, t+10], full=False)
    a(f'''
    v_readlane_b32 s{sT+1}, v{t}, 31
    v_readlane_b32 s{sT+2}, v{t+1}, 31
    v_readlane_b32 s{sT+3}, v{t+10}, 31
    v_mov_b32 v{t+8}, 0x3d000000
    v_mul_f32 v{t+8}, s{sT+1}, v{t+8}
    v_add_f32 v{t}, s{sT}, v{t+8}
    v_mul_f32 v{t+9}, s{sT+1}, v{t+8}
    v_sub_f32 v{t+9}, s{sT+2}, v{t+9}
    v_mov_b32 v{t+10}, s{sT+3}
    v_fmac_f32 v{t+10}, 0x45800000, v{t+9}
    v_mov_b32 v{t+11}, 0x3727c5ac
    v_fmac_f32 v{t+11}, 0x37000000, v{t+10}
    v_rsq_f32 v{t+1}, v{t+11}
    v_mov_b32 v{t+2}, {COMM + 64}
    ds_write_b64 v{t+2}, v[{t}:{t+1}]
    s_waitcnt lgkmcnt(0)
    s_branch L_st_join
    ''')
    a.label('L_st_other')
    a(f's_cmp_eq_u32 s{sLAYER}, 0\n s_cbranch_scc1 L_st_join')
    bulk_units(2)
    a.label('L_st_join')
    a(f'''
    v_mov_b32 v{t+2}, {COMM + 64}
    s_lshl_b32 s{sT+5}, s{sLAYER}, 21
    s_add_u32 s{sT+7}, s{sABASE}, s{sT+5}
    s_lshl_b32 s{sT+4}, s{sB}, 20
    s_add_u32 s{sT+4}, s{sT+4}, s{sT+5}
    ''')
    a_voff(t + 12)
    a(f'''
    s_barrier
    ds_read_b64 v[{t}:{t+1}], v{t+2}
    s_waitcnt lgkmcnt(0)
    ''')
    g.norm_silu_pack()
    a(f'''
    buffer_store_dwordx4 v[{TMP}:{TMP+3}], v{t+12}, s[{S_WS}:{S_WS+3}], s{sT+7} offen {SC}
    buffer_store_dwordx4 v[{TMP+4}:{TMP+7}], v{t+12}, s[{S_WS}:{S_WS+3}], s{sT+7} offen offset:256 {SC}
    ''')
    g.stamp_l(5)
    g.srd(S_A, P_WS, 1 << 20, add_sgpr=sT + 4)
    g.zero_acc()
    a(f's_cmp_lg_u32 s{sLAYER}, 0\n s_cbranch_scc1 L_l1wait')
    for i in range(4): a(f'v_mov_b32 v{TMP+8+i}, -1')
    a(f'''
    s_add_u32 s{sT+7}, s{sABASE}, {1 << 21}
    {';' if 'nomark' in EXP else ''} buffer_store_dwordx4 v[{TMP+8}:{TMP+11}], v{t+12}, s[{S_WS}:{S_WS+3}], s{sT+7} offen {SC}
    {';' if 'nomark' in EXP else ''} buffer_store_dwordx4 v[{TMP+8}:{TMP+11}], v{t+12}, s[{S_WS}:{S_WS+3}], s{sT+7} offen offset:256 {SC}
    s_lshl_b32 s{sT+8}, s{sB}, 16
    s_add_u32 s{sT+8}, s{sT+8}, {WS_FLAG}
    s_lshl_b32 s{sT+1}, s{sPXT}, 11
    s_lshl_b32 s{sT}, s{sOC0}, 2
    s_add_u32 s{sT}, s{sT}, s{sT+1}
    s_add_u32 s{sT+7}, s{sT}, s{sT+8}
    s_lshl_b32 s{sT}, s{sG}, 14
    s_add_u32 s0, s{sT+8}, s{sT}
    v_lshlrev_b32 v{t}, 14, v{vLANE}
    v_mov_b32 v{t+1}, s{sTAG}
    v_lshrrev_b32 v{t+12}, 4, v{vLANE}
    v_cmp_eq_u32 vcc, 3, v{t+12}
    v_cndmask_b32 v{t+12}, v{t+12}, 1, vcc
    s_sub_u32 s{sT}, s{sPXT}, 1
    v_add_u32 v{t+12}, s{sT}, v{t+12}
    v_med3_i32 v{t+12}, v{t+12}, 0, 7
    v_and_b32 v{t+13}, 15, v{vLANE}
    v_lshlrev_b32 v{t+13}, 7, v{t+13}
    v_lshl_add_u32 v{t+12}, v{t+12}, 11, v{t+13}
    s_waitcnt vmcnt(0)
    ''')
    g.stamp(10)
    a('s_barrier')
    g.stamp(11)
    a(f'''
    s_cmp_lg_u32 s{sWAVE}, 0
    s_cbranch_scc1 L_fl_nostore
    s_mov_b64 exec, 15
    buffer_store_dword v{t+1}, v{t}, s[{S_WS}:{S_WS+3}], s{sT+7} offen {SC}
    s_mov_b64 exec, -1
    ''')
    a.label('L_fl_nostore')
    a(f's_mov_b32 s{S_W+2}, {g.WREC}')
    for u in ((2, 3) if EARLYU else (0, 1, 2, 3)): g.dma_unit(u, sW0, g.UOFF[u])
    g.load_gb(P_G2, P_B2)
    g.emb_compute_publish(SC)
    g.unpack_gb()
    g.stamp(12)
    a(f's_cmp_lg_u32 s{sWAVE}, 0\n s_cbranch_scc1 L_fl_join')
    g.poll4(lambda: a(f'buffer_load_dword v{t+13}, v{t+12}, s[{S_WS}:{S_WS+3}], s0 offen {SC}'), [t + 13], 'pflag', SLP)
    a.label('L_fl_join')
    a('s_waitcnt vmcnt(0)')
    g.stamp(13)
    a('s_barrier')
    a('s_branch L_acts')
    a.label('L_l1wait')
    a(f's_waitcnt vmcnt({L1WAIT})')
    a.label('L_acts')
    g.stamp_l(6)
    g.first_acts(AF)
    a(f's_mov_b32 s{sT+5}, 0')
    a(f's_cmp_lg_u32 s{sLAYER}, 0\n s_cbranch_scc1 L_nowarm')
    n2 = (warm(P_W1, W1A, 9216) if W1A < 9216 else 0) + warm(P_W2, 0, 9216)
    g.first_frags()
    a(f's_waitcnt vmcnt({n2})')
    a('s_branch L_go')
    a.label('L_nowarm')
    g.act_poll(vR[0], sT + 5, AF, 'pact', first_issued=True, extra_after=0)
    a.label('L_go')
    g.stamp_l(7)
    g.conv_loop(AF)
    g.stamp_l(8)
    a(f's_cmp_lg_u32 s{sLAYER}, 0\n s_cbranch_scc1 L_noeg')
    g.emb_gather_addr(TMP + 64)
    g.emb_gather_issue(TMP + 64, SC)
    a.label('L_noeg')
    g.conv_reduce(2 * SLOT)
    g.stamp_l(9)
    a(f's_cmp_lg_u32 s{sLAYER}, 0\n s_cbranch_scc1 L_final')
    g.poll4(lambda: None, [TMP + 65, TMP + 67, TMP + 69, TMP + 71], 'pemb', SLP, retry=lambda: g.emb_gather_issue(TMP + 64, SC))
    g.emb_gather_reduce(TMP + 64)
    for c in range(8):
        a(f'v_add_f32 v{vVAL+2*c}, s{sEMB+c}, v{vVAL+2*c}\n v_add_f32 v{vVAL+2*c+1}, s{sEMB+c}, v{vVAL+2*c+1}')
    a(f's_mov_b32 s{sLAYER}, 1')
    a('s_branch L_layer')
    g.retry_routines(AF)
    a.label('L_final')
    g.srd(S_OUT, P_OUT, 2 << 20)
    g.out_store()
    a(f'''
    s_lshr_b32 s{sT}, s2, 3
    s_or_b32 s{sT}, s{sT}, s{sG}
    s_or_b32 s{sT}, s{sT}, s{sWAVE}
    s_cmp_lg_u32 s{sT}, 0
    s_cbranch_scc1 L_noep
    s_lshl_b32 s{sT}, s{sB}, 8
    s_add_u32 s{sT}, s{sT}, {WS_EPOCH}
    v_mov_b32 v{t}, 0
    v_mov_b32 v{t+1}, s{sTAG}
    s_mov_b64 exec, 1
    buffer_store_dword v{t+1}, v{t}, s[{S_WS}:{S_WS+3}], s{sT} offen
    s_mov_b64 exec, -1
    ''')
    a.label('L_noep')
    if STAMPS: a('s_waitcnt vmcnt(0)')
    g.stamp(15); g.stamp_flush(0)
    g.end_kernel('L_exit')
    a.label('L_code_end')
    txt = hdr + a.text() + '.section .rodata,"a"\n' + kd(name, NVGPR, 64)
    return txt

if __name__ == '__main__':
    if '--stamps' in sys.argv:
        STAMPS = True; sys.argv.remove('--stamps')
    for x in list(sys.argv):
        if x.startswith('--exp='):
            EXP = set(x[6:].split(',')); sys.argv.remove(x)
    for x in list(sys.argv):
        if x.startswith('--set='):
            k, v = x[6:].split('='); globals()[k] = int(v); sys.argv.remove(x)
    mode = 'fused'
    out = sys.argv[1] if len(sys.argv) > 1 else 'standalone__adm_resblock__diffusion.s'
    txt = gen_fused()
    open(out, 'w').write(txt)
    print('wrote', out, len(txt))
```
